```python
import torch

def _softmax(x, axis=-1):
    return torch.softmax(x, dim=axis)
def _gelu(x):
    return torch.nn.functional.gelu(x, approximate="tanh")
def _silu(x):
    return torch.nn.functional.silu(x)
def _sigmoid(x):
    return torch.sigmoid(x)
def _layernorm(x, axis=-1, eps=1e-5):
    m = x.mean(dim=axis, keepdim=True)
    v = x.var(dim=axis, keepdim=True, unbiased=False)
    return (x - m) / torch.sqrt(v + eps)
def _scatter_add(tgt, idx, src, axis=0):
    return tgt.clone().index_add_(axis, idx, src)
def _segment_sum(src, seg, n):
    out = torch.zeros((n,) + src.shape[1:], dtype=src.dtype)
    return out.index_add_(0, seg, src)
def _pad(x, pw):
    flat = tuple(v for pair in reversed(pw) for v in pair)
    return torch.nn.functional.pad(x, flat)

kernel_name = 'gated_mix__sliding_block_cached__glu_gated_swiglu__decode'

def setup_inputs():

    _w = (lambda a: (lambda t: t.to(torch.bfloat16) if t.is_floating_point() else t)(torch.as_tensor(a)))
    def _A_setup():
        B, Sq, D = 8, 1, 512
        Hq, Hkv, Sk, Dh = 32, 8, 4096, 128
        assert Hq % Hkv == 0, (Hq, Hkv)
        return {
            "x": _w((lambda *s: torch.randn(*s, dtype=torch.bfloat16) * 0.05)(B, Sq, D)),
            "k_cache": _w((lambda *s: torch.randn(*s, dtype=torch.bfloat16) * 3.2)(B, Hkv, Sk, Dh)),
            "v_cache": _w((lambda *s: torch.randn(*s, dtype=torch.bfloat16) * 0.05)(B, Hkv, Sk, Dh)),
            "wq": _w((lambda *s: torch.randn(*s, dtype=torch.bfloat16) * 3.2)(D, Hq * Dh) * (D ** -0.5)),
            "wo": _w((lambda *s: torch.randn(*s, dtype=torch.bfloat16) * 0.05)(Hq * Dh, D) * ((Hq * Dh) ** -0.5)),
        }
    _A_in = _A_setup()

    def _B_setup():
        B, S, D, F = 8, 1, 512, 1792
        return {
            "x": _w((lambda *s: torch.randn(*s, dtype=torch.bfloat16) * 0.05)(B, S, D)),
            "w1": _w((lambda *s: torch.randn(*s, dtype=torch.bfloat16) * 0.2)(D, F) * (2.0 / D) ** 0.5),
            "w3": _w((lambda *s: torch.randn(*s, dtype=torch.bfloat16) * 0.2)(D, F) * (2.0 / D) ** 0.5),
            "w2": _w((lambda *s: torch.randn(*s, dtype=torch.bfloat16) * 0.2)(F, D) * (2.0 / F) ** 0.5),
        }
    _B_in = _B_setup()

    return {
        "A_x": _A_in["x"],
        "A_k_cache": _A_in["k_cache"],
        "A_v_cache": _A_in["v_cache"],
        "A_wq": _A_in["wq"],
        "A_wo": _A_in["wo"],
        "B_x": _B_in["x"],
        "B_w1": _B_in["w1"],
        "B_w3": _B_in["w3"],
        "B_w2": _B_in["w2"],
        "gate_w": _w((lambda *s: torch.randn(*s, dtype=torch.bfloat16) * 0.05)(512) * 16.0),
    }

def reference(A_x, A_k_cache, A_v_cache, A_wq, A_wo, B_x, B_w1, B_w3, B_w2, gate_w):
    def _A_ref(x, k_cache, v_cache, wq, wo):
        B, Sq, D = x.shape
        Hq, Dh = 32, 128
        Hkv, Sk = k_cache.shape[1], k_cache.shape[2]
        W = min(4096, max(256, Sk // 4))
        rep = Hq // Hkv
        q = (lambda x, *d: x.permute(*d))((x @ wq).reshape(B, Sq, Hq, Dh), 0, 2, 1, 3)
        k = (lambda x, n, axis: torch.repeat_interleave(x, n, dim=axis))(k_cache[:, :, Sk - W:, :], rep, axis=1)
        v = (lambda x, n, axis: torch.repeat_interleave(x, n, dim=axis))(v_cache[:, :, Sk - W:, :], rep, axis=1)
        scores = torch.einsum("bhqd,bhkd->bhqk", q, k) * (Dh ** -0.5)
        p = _softmax(scores, axis=-1)
        o = torch.einsum("bhqk,bhkd->bhqd", p, v)
        return (lambda x, *d: x.permute(*d))(o, 0, 2, 1, 3).reshape(B, Sq, Hq * Dh) @ wo

    def _B_ref(x, w1, w3, w2):
        gate = torch.einsum("bsd,df->bsf", x, w1)
        up = torch.einsum("bsd,df->bsf", x, w3)
        h = _silu(gate) * up
        out = torch.einsum("bsf,fd->bsd", h, w2)
        return out

    x = A_x
    g = _sigmoid((x * gate_w).sum(-1, keepdims=True))
    a = _A_ref(x, A_k_cache, A_v_cache, A_wq, A_wo)
    b = _B_ref(x, B_w1, B_w3, B_w2)
    return g * a + (1 - g) * b
```

```python
import sys, struct, re
NAME = "gated_mix__sliding_block_cached__glu_gated_swiglu__decode"
STAMP_OFF = 128 << 20
NWAVES = 5

L_K = 0
L_V = 65536
L_A = 98304
L_WO = 131072
L_X0 = L_WO
L_X1 = L_X0 + 4 * 1040
L_GW = L_X1 + 4 * 1040
L_W2 = 147456
L_M = 155648
F_PROG, F_GO, F_A, F_Q, F_MX, F_P = 0, 4, 8, 12, 16, 20
O_MAX = 32
O_G = 64
O_Q = 128
O_H = 1280
O_P = 2560
O_X = 4608
O_Y = 5632
O_JUNK = 6144
LDS_BYTES = 163840
WS_A = 0
WS_B = 512 << 10
WS_S = 768 << 10
WS_X = 792 << 10
WS_E = 800 << 10
WS_C = 1 << 20
WS_END = WS_C + (512 << 10)
LOG2E = 1.4426950408889634
FF_BYTES = 512 * 1792 * 2

def fbits(x):
    return "0x%08x" % struct.unpack("<I", struct.pack("<f", x))[0]

class G:
    def __init__(self):
        self.L = []
        self.nlab = 0
    def __call__(self, s):
        for line in s.split("\n"):
            line = line.strip()
            if line:
                self.L.append(line if line.endswith(":") or line.startswith(";") else "    " + line)
    def lab(self, p="L"):
        self.nlab += 1
        return f"{p}_{self.nlab}"

def gen(k=6, stamps=False, only=None, spin=2000000, echo=None, fast=True, nocomp=False, lst=False, gst=(), chk_g=13, cw_g=28, backoff=8, bar=True, prio=0):
    if echo is not None: stamps = True
    W = 4 * k
    e = G()
    PX, PK, PV, PWQ, PWO, PW1, PW3, PW2, PG, POUT, PWS = 4, 6, 8, 10, 12, 16, 18, 20, 22, 24, 28
    RA, RB, RWS = 32, 36, 40
    def R(b): return f"s[{b}:{b+3}]"
    sW, sG, sR, sHH, sC, sB = "s3", "s44", "s45", "s46", "s47", "s48"
    sT0, sT1, sT2, sT3 = "s49", "s50", "s51", "s52"
    nst = [0]
    def stamp():
        if stamps:
            i = nst[0]; nst[0] += 1
            if only is None or i in only: e(f"s_memrealtime s[96:97]\ns_waitcnt lgkmcnt(0)\nv_writelane_b32 v255, s96, {i}")
    def srd(d, p, n):
        return f"s_mov_b64 s[{d}:{d+1}], s[{p}:{p+1}]\ns_mov_b32 s{d+2}, {n}\ns_mov_b32 s{d+3}, 0x20000\n"
    def lds_wait(off, n, also=""):
        l = e.lab("W")
        e(f"{l}:\nds_read_b32 v2, v1 offset:{off}\n{also}\ns_waitcnt lgkmcnt(0)\nv_readfirstlane_b32 {sT0}, v2\ns_cmp_ge_i32 {sT0}, {n}\ns_cbranch_scc0 {l}")
    def signal(off):
        e(f"s_mov_b64 exec, 1\nds_add_u32 v1, v12 offset:{off}\ns_mov_b64 exec, -1")
    def mfma(d, a, b, first):
        e(f"v_mfma_f32_16x16x32_bf16 v[{d}:{d+3}], v[{a}:{a+3}], v[{b}:{b+3}], " + ("0" if first else f"v[{d}:{d+3}]"))
    def trfrag(r, v, off, half):
        e(f"ds_read_b64_tr_b16 v[{r}:{r+1}], v{v} offset:{off}\nds_read_b64_tr_b16 v[{r+2}:{r+3}], v{v} offset:{off + half}")

    if stamps: e("s_memrealtime s[98:99]")
    e(f"""s_load_dwordx16 s[4:19], s[0:1], 0
s_load_dwordx8 s[20:27], s[0:1], 64
s_load_dwordx2 s[28:29], s[0:1], 96
v_lshrrev_b32 v2, 6, v0
s_cmp_ge_u32 s2, 256
v_readfirstlane_b32 {sW}, v2
s_cbranch_scc1 L_end
v_mov_b32 v1, {L_M}
v_and_b32 v0, 63, v0
s_and_b32 {sG}, s2, 7
s_lshr_b32 {sR}, s2, 3
s_sub_u32 {sW}, {sW}, 1
s_cbranch_scc1 L_loader
s_getpc_b64 s[64:65]
L_pc:
s_lshl2_add_u32 {sT0}, {sR}, {sW}
s_lshl_b32 {sT0}, {sT0}, 6
s_min_u32 {sT0}, {sT0}, L_end - L_pc
s_load_dword s66, s[64:65], {sT0}
s_barrier
s_branch L_compute""")

    sStr, sOff, sKV, sWo, sW2, s8R, sCnt, sKH, sRot, sU = "s53", "s54", "s55", "s56", "s57", "s58", "s59", "s60", "s67", "s68"
    e(f"""L_loader:
s_and_b32 {sT0}, {sR}, 28
s_lshl_b32 {sT0}, {sT0}, 1
s_add_u32 {sT0}, {sT0}, {sG}
s_sub_u32 {sT0}, {sT0}, 32
s_cmp_lt_u32 {sT0}, 28
s_cselect_b32 s{RA+2}, {FF_BYTES}, 0
s_lshr_b32 {sT1}, {sR}, 1
s_lshl3_add_u32 {sT1}, {sG}, {sT1}
s_movk_i32 {sStr}, 3584
s_cmp_lt_u32 {sR}, 16
s_cselect_b32 s{RA+2}, {4<<20}, s{RA+2}
s_cselect_b32 {sOff}, {sT1}, {sT0}
s_cselect_b32 {sStr}, 8192, {sStr}
s_and_b32 {sKH}, {sR}, 1
s_mul_i32 {sT0}, {sStr}, {sKH}
s_lshl1_add_u32 {sOff}, {sT0}, {sOff}
s_lshl_b32 {sOff}, {sOff}, 7
s_lshl_b32 {s8R}, {sStr}, 3
s_mov_b32 s{RA+3}, 0x20000
s_mov_b32 m0, {L_A}
v_lshrrev_b32 v5, 3, v0
v_and_b32 v6, 6, v5
v_and_b32 v7, 7, v0
v_xor_b32 v6, v6, v7
v_lshlrev_b32 v6, 4, v6
v_mad_u32_u24 v8, v5, {sStr}, v6
v_lshl_add_u32 v3, v0, 2, v1
v_mov_b32 v4, 0xff800000
v_cmp_gt_u32 vcc, 8, v0
s_mov_b64 exec, 0xfff
s_lshl_b32 s61, {sG}, 5
v_cndmask_b32 v4, v4, 0, vcc
ds_write_b32 v3, v4
s_mov_b64 exec, -1
s_add_u32 s61, s61, {sR}
s_lshl_b32 s70, s61, 7
s_add_u32 s70, s70, {WS_E}
s_lshl2_add_u32 s71, s61, {WS_X}
s_mov_b32 s{RWS+2}, {WS_END}
s_mov_b32 s{RWS+3}, 0x20000
s_lshl_b32 s62, s61, 11
s_lshl_b32 s63, s61, 10
s_add_u32 s63, s63, {WS_B}
s_lshl_b32 s61, s61, 5
s_add_u32 s61, s61, {WS_S}
s_and_b32 {sC}, {sR}, 7
s_lshr_b32 {sHH}, {sR}, 3
v_lshlrev_b32 v16, 4, v0
v_mov_b32 v20, -1
v_mov_b32 v21, -1
v_mov_b32 v22, -1
v_mov_b32 v23, -1
v_mov_b32 v3, {-W}""")
    if stamps: e("v_mov_b32 v255, 0\ns_mov_b32 s95, 4")
    e(f"""{f"s_setprio {prio}" if prio else ""}
s_bitcmp1_b32 {sR}, 1
s_waitcnt lgkmcnt(0)
s_barrier
s_cselect_b64 s[{RA}:{RA+1}], s[{PW3}:{PW3+1}], s[{PW1}:{PW1+1}]
s_cmp_lt_u32 {sR}, 16
s_cselect_b64 s[{RA}:{RA+1}], s[{PWQ}:{PWQ+1}], s[{RA}:{RA+1}]""")
    if stamps:
        e("v_writelane_b32 v255, s98, 0"); nst[0] = 1
        if lst: stamp()
    clears = f"""; sentinel words (plain stores, they stay in this XCD's L2): own A record, slice r of the group's B area and of its stats
s_load_dword s65, s[{PWS}:{PWS+1}], s71
s_mov_b64 s[{RWS}:{RWS+1}], s[{PWS}:{PWS+1}]
buffer_store_dwordx4 v[20:23], v16, {R(RWS)}, s62 offen
buffer_store_dwordx4 v[20:23], v16, {R(RWS)}, s62 offen offset:1024
buffer_store_dwordx4 v[20:23], v16, {R(RWS)}, s63 offen
s_mov_b64 exec, 3
buffer_store_dwordx4 v[20:23], v16, {R(RWS)}, s61 offen
s_mov_b64 exec, -1
"""
    arrive = f"""; arrival: Y = X + 1 + xcc once the sentinels are in place, X being whatever the word held at entry (the end of the launch sets X = Y).
s_getreg_b32 s66, hwreg(HW_REG_XCC_ID, 0, 3)
v_mov_b32 v25, 0
s_waitcnt lgkmcnt(0)
s_add_u32 s65, s65, s66
s_add_u32 s65, s65, 1
v_mov_b32 v24, s65
s_mov_b64 exec, 1
buffer_store_dword v24, v25, {R(RWS)}, s70 offen sc1
s_mov_b64 exec, -1
"""
    check = f"""; copy of all X words and of the group's Y words for the compute waves
s_mov_b32 s71, {WS_X}
s_mov_b32 s69, m0
s_mov_b32 m0, {L_M + O_X}
v_lshlrev_b32 v17, 7, v0
buffer_load_dwordx4 v16, {R(RWS)}, s71 offen lds
s_mov_b32 m0, {L_M + O_Y}
s_lshl_b32 s71, {sG}, 12
s_add_u32 s71, s71, {WS_E}
s_mov_b32 exec_hi, 0
buffer_load_dword v17, {R(RWS)}, s71 offen sc1 lds
s_mov_b64 exec, -1
s_mov_b32 m0, s69
"""
    cwarm = f"""; read the own C in-box once (into unused LDS) so that its lines are in the memory-side cache when the partial sums arrive
s_lshl2_add_u32 s71, {sC}, {sHH}
s_lshl_b32 {sT0}, {sG}, 5
s_add_u32 s71, s71, {sT0}
s_lshl_b32 s71, s71, 11
s_add_u32 s71, s71, {WS_C}
s_mov_b32 s69, m0
s_mov_b32 m0, {L_M + O_JUNK}
s_nop 0
buffer_load_dwordx4 v16, {R(RWS)}, s71 offen lds
buffer_load_dwordx4 v16, {R(RWS)}, s71 offen offset:1024 lds
s_mov_b32 m0, s69
"""
    setup_x = srd(RB, PX, 8192) + f"""v_lshrrev_b32 v4, 5, v0
v_and_b32 v7, 31, v0
v_lshlrev_b32 v7, 4, v7
v_lshl_add_u32 v4, v4, 10, v7
v_lshl_add_u32 v9, v5, 10, v6
s_lshl_b32 {sT1}, {sKH}, 9
s_mov_b32 m0, {L_X0}
s_nop 0"""
    setup_k = srd(RB, PK, 64 << 20) + f"""s_lshr_b32 {sKV}, {sR}, 2
s_lshl3_add_u32 {sKV}, {sKV}, {sG}
s_lshl_b32 {sKV}, {sKV}, 4
s_and_b32 {sT0}, {sR}, 3
s_add_u32 {sKV}, {sKV}, {sT0}
s_add_u32 {sKV}, {sKV}, 12
s_lshl_b32 {sKV}, {sKV}, 16
; 256-byte rows, 4 per instruction: slot (row, pos) holds chunk pos ^ (row & 15) for K, pos ^ 2*(row & 7) for V
v_lshrrev_b32 v5, 4, v0
v_and_b32 v7, 15, v0
v_xor_b32 v6, v7, v5
v_lshlrev_b32 v6, 4, v6
v_lshl_add_u32 v10, v5, 8, v6
v_xor_b32 v11, 64, v10
v_xor_b32 v12, 0x80, v10
v_xor_b32 v13, 0xc0, v10
v_lshlrev_b32 v6, 1, v5
v_xor_b32 v6, v7, v6
v_lshlrev_b32 v6, 4, v6
v_lshl_add_u32 v14, v5, 8, v6
v_xor_b32 v15, 0x80, v14
s_lshl_b32 {sRot}, {sR}, 12
s_mov_b32 m0, {L_K}"""
    setup_v = f"""s_mov_b64 s[{RB}:{RB+1}], s[{PV}:{PV+1}]
s_mov_b32 m0, {L_V}
s_lshl_b32 {sT0}, {sC}, 7
s_lshl2_add_u32 {sWo}, {sG}, {sHH}
s_lshl_b32 {sWo}, {sWo}, 17
s_add_u32 {sWo}, {sWo}, {sT0}
s_lshl3_add_u32 {sT3}, {sHH}, {sG}
s_lshl_b32 {sW2}, {sT3}, 16
s_add_u32 {sW2}, {sW2}, {sT0}
s_mov_b64 s[{RA}:{RA+1}], s[{PW2}:{PW2+1}]
s_cmp_lt_u32 {sT3}, 28
s_cselect_b32 s{RA+2}, {FF_BYTES}, 0
s_mov_b32 {sU}, {L_W2}
"""
    waitA = "" if nocomp else f"; the stage-A block, x and gate_w have been read: their LDS may be overwritten\nL_waitA:\nds_read_b32 v2, v1 offset:{F_A}\ns_waitcnt lgkmcnt(0)\nv_readfirstlane_b32 {sT0}, v2\ns_cmp_ge_u32 {sT0}, 4\ns_cbranch_scc0 L_waitA"
    xgroup = f"buffer_load_dwordx4 v4, {R(RB)}, {sT1} offen lds\ns_add_u32 m0, m0, 1040\ns_add_u32 {sT1}, {sT1}, 2048\n" * 4
    def blkgroup(v, rs):
        return f"buffer_load_dwordx4 {v}, {R(rs)}, {sOff} offen nt lds\ns_add_u32 m0, m0, 1024\ns_add_u32 {sOff}, {sOff}, {s8R}\n" * 4
    def kvgroup(v0, msk):
        t = f"s_and_b32 {sRot}, {sRot}, 0xffff\ns_add_u32 {sOff}, {sKV}, {sRot}\n"
        for j in range(4):
            t += f"buffer_load_dwordx4 v{v0 + (j & msk)}, {R(RB)}, {sOff} offen offset:{j*1024} nt lds\n"
        return t + f"s_add_u32 m0, m0, 4096\ns_add_u32 {sRot}, {sRot}, 4096\n"
    w2load = f"s_mov_b32 m0, {sU}\ns_add_u32 {sU}, {sU}, 1024\nbuffer_load_dwordx4 v9, {R(RA)}, {sW2} offen nt lds\ns_add_u32 {sW2}, {sW2}, 8192\n"
    segs = [
        ("", blkgroup("v8", RA), 8, "A"),
        (setup_x, xgroup, 1, "x0"),
        (f"s_xor_b32 {sT1}, {sKH}, 1\ns_lshl_b32 {sT1}, {sT1}, 9", xgroup + srd(RB, PG, 1024) + f"buffer_load_dwordx4 v16, {R(RB)}, 0 offen lds\n", 1, "x1"),
        (setup_k, kvgroup(10, 3), 16, "K"),
        (setup_v, kvgroup(14, 1) + "s_mov_b32 s69, m0\n" + w2load * 2 + "s_mov_b32 m0, s69\n", 4, "VW"),
        ("", kvgroup(14, 1), 4, "V"),
        (waitA, kvgroup(14, 1), 8, "V"),
        (srd(RB, PWO, 4 << 20) + f"s_mov_b32 {sOff}, {sWo}\ns_mov_b32 {s8R}, 8192\ns_mov_b32 m0, {L_WO}\ns_nop 0", blkgroup("v9", RB), 4, "wo"),
    ]
    nops = lambda t: len(re.findall(r"buffer_(?:load|store)", t))
    gi, ops, pend = 0, 0, 0
    P, kdone, vdone = {}, [], []
    cuts = sorted(set([k, k + 1, chk_g + 1, cw_g + 1] + [x + 1 for x in gst]))
    def extra(t):
        nonlocal ops, pend
        e(t); ops += nops(t); pend += nops(t)
    extra(clears)
    for pre, body, n, name in segs:
        e(pre)
        nb = nops(body)
        while n > 0:
            m = min([n] + [c - gi for c in cuts if c > gi])
            t = body
            if gi >= k:
                if pend: e(f"v_add_u32 v3, {pend}, v3"); pend = 0
                t += f"s_waitcnt vmcnt({W})\nv_add_u32 v3, {nb}, v3\nds_write_b32 v1, v3 offset:{F_PROG}\n"
            else:
                pend += m * nb
            if m == 1:
                e(t)
            else:
                l = e.lab("LD")
                e(f"s_mov_b32 {sCnt}, {m}\n{l}:\n{t}s_sub_u32 {sCnt}, {sCnt}, 1\ns_cmp_lg_u32 {sCnt}, 0\ns_cbranch_scc1 {l}")
            for j in range(m):
                if name == "K": kdone.append(ops + 4)
                if name.startswith("V"): vdone.append(ops + 4)
                ops += nb
            gi += m; n -= m
            if gi - 1 in gst: stamp()
            if gi == k + 1:
                extra(arrive)
                if lst: stamp()
            if gi == chk_g + 1:
                extra(check); P["chk"] = ops
            if gi == cw_g + 1: extra(cwarm)
        P[name] = ops
        if lst: stamp()
    assert pend == 0 and 5 <= k <= 8 and chk_g > k and ops - vdone[-1] == 16
    P_V = lambda ksteps: vdone[2*ksteps - 1]
    for left in range(W - 4, 0, -4):
        if bar and left <= 16:
            if left in (16, 4): e(f"s_waitcnt vmcnt({left})\ns_barrier")
        else:
            e(f"s_waitcnt vmcnt({left})\nv_add_u32 v3, 4, v3\nds_write_b32 v1, v3 offset:{F_PROG}")
    e("s_waitcnt vmcnt(0)")
    stamp()
    e("s_barrier")
    e("s_branch L_stampout" if stamps and echo is None else "s_endpgm")

    nst[0] = 1
    e("L_compute:")
    if stamps: e("v_mov_b32 v255, 0\ns_mov_b32 s95, s3")
    if nocomp:
        e("s_waitcnt lgkmcnt(0)")
        if stamps: e("v_writelane_b32 v255, s98, 0")
        e("s_branch " + ("L_stampout" if stamps else "L_end"))
    vN, vG4 = "v3", "v4"
    vAo, vBo, vSo, vCo = "v5", "v6", "v7", "v8"
    sSlot, sMT, sNH, sH = "s53", "s54", "s55", "s56"
    sAo, sBo, sSo, sCo = "s57", "s58", "s59", "s60"
    sSig, sSpin, sEg, sQo, sFo, sFo2, sCS = "s61", "s62", "s63", "s64", "s65", "s66", "s67"
    sBi, sSi, sBi2, sPure, sCi, sOo, mOdd, sY, sTag, sTM = "s68", "s69", "s70", "s71", "s72", "s73", "s[74:75]", "s76", "s77", "s78"
    WS, ROUT = R(RWS), RB
    MA, MB, MC = 0x00ff00ff00ff00ff, 0x000f000f000f000f, 0x3333333333333333
    def setexec(m):
        e(f"s_mov_b32 exec_lo, {hex(m & 0xffffffff)}\ns_mov_b32 exec_hi, {hex(m >> 32)}")
    vXa, vWa, vAa, vKa, vVa, vQa, vPa, vHa, vGa = 16, 17, 19, 20, 24, 26, 27, 28, 31
    vYo, vGx, vGw, vQo, vFo = "v101", "v102", 103, "v105", "v106"
    vBi, vSi, vTag, vCi, vOo = "v197", "v198", "v199", "v13", "v14"
    assert WS_A == 0
    e(f"""s_lshr_b32 {sHH}, {sR}, 3
s_and_b32 {sC}, {sR}, 7
s_lshr_b32 {sB}, {sR}, 2
s_lshl_b32 {sSlot}, {sG}, 5
s_add_u32 {sSlot}, {sSlot}, {sR}
s_and_b32 {sMT}, {sW}, 1
s_lshr_b32 {sNH}, {sW}, 1
s_lshl2_add_u32 {sH}, {sG}, {sHH}
v_mov_b32 v12, 1
v_and_b32 {vN}, 15, v0
v_lshrrev_b32 {vG4}, 4, v0
v_lshlrev_b32 v9, 4, {vG4}
s_lshl_b32 {sAo}, {sSlot}, 5
s_add_u32 {sAo}, {sAo}, {sW}
s_lshl_b32 {sAo}, {sAo}, 6
v_lshl_add_u32 {vAo}, {vN}, 8, v9
v_and_b32 v11, 1, {vN}
v_bfe_u32 v10, {vN}, 1, 2
v_mul_u32_u24 v{vXa}, 1040, v10
v_lshl_add_u32 v{vXa}, v11, 9, v{vXa}
v_lshl_add_u32 v{vXa}, {vG4}, 3, v{vXa}
v_add_u32 v{vXa}, {L_X0}, v{vXa}
s_lshl_b32 {sCo}, {sMT}, 5
s_add_u32 {sCo}, {sCo}, {sC}
s_lshl1_add_u32 {sCo}, {sCo}, {sNH}
s_lshl_b32 {sCo}, {sCo}, 6
s_add_u32 {sCo}, {sCo}, {sH}
s_lshl_b32 {sCo}, {sCo}, 6
s_add_u32 {sCo}, {sCo}, {WS_C}
v_lshrrev_b32 v10, 2, {vN}
v_lshl_add_u32 {vCo}, v10, 16, v9
v_lshl_add_u32 {vCo}, v11, 11, {vCo}
v_cmp_eq_u32 {mOdd}, 1, v11
v_lshl_add_u32 v10, {vG4}, 2, v10
v_bfe_u32 v29, {vN}, 1, 1
v_lshlrev_b32 v11, 3, v11
v_and_b32 v30, 6, v10
v_xor_b32 v30, v30, v29
v_lshl_add_u32 v30, v30, 4, v11
v_lshl_add_u32 v30, v10, 7, v30
s_lshl_b32 {sT0}, {sW}, 5
v_xor_b32 v{vAa}, {sT0}, v30
v_add_u32 v{vAa}, {L_A}, v{vAa}
s_lshl_b32 {sT0}, {sNH}, 6
v_xor_b32 v{vWa}, {sT0}, v30
v_add_u32 v{vWa}, {L_WO}, v{vWa}
v_xor_b32 v{vWa+1}, 32, v{vWa}
v_and_b32 v30, 7, v10
v_lshlrev_b32 v30, 1, v30
v_xor_b32 v30, v30, v29
v_lshl_add_u32 v30, v30, 4, v11
v_lshl_add_u32 v30, v10, 8, v30
s_lshl_b32 {sT0}, {sW}, 6
v_xor_b32 v{vVa}, {sT0}, v30
v_add_u32 v{vVa}, {L_V}, v{vVa}
v_xor_b32 v{vVa+1}, 32, v{vVa}
v_xor_b32 v30, {vG4}, {vN}
v_lshlrev_b32 v30, 4, v30
v_lshl_add_u32 v30, {vN}, 8, v30
s_lshl_b32 {sT0}, {sW}, 12
v_add_u32 v{vKa}, {sT0}, v30
v_xor_b32 v{vKa+1}, 64, v{vKa}
v_xor_b32 v{vKa+2}, 0x80, v{vKa}
v_xor_b32 v{vKa+3}, 0xc0, v{vKa}
v_and_b32 v30, 3, {vN}
v_mul_u32_u24 v{vQa}, 272, v30
v_add3_u32 v{vQa}, v{vQa}, v9, v1
v_lshl_add_u32 v{vPa}, v30, 6, v9
v_add_u32 v{vPa}, v{vPa}, v1
v_lshlrev_b32 {vOo}, 3, v30
v_lshl_add_u32 {vOo}, {vG4}, 1, {vOo}
v_lshrrev_b32 v30, 2, {vN}
s_lshl_b32 {sT0}, {sMT}, 2
v_add_u32 v{vGa}, {sT0}, v30
v_mul_u32_u24 v{vHa}, 144, v{vGa}
v_lshl_add_u32 v{vHa}, {vG4}, 3, v{vHa}
v_add_u32 v{vHa}, v{vHa}, v1
v_lshl_add_u32 v{vGa}, v{vGa}, 2, v1
s_mul_i32 {sT0}, {sW}, 1040
s_add_u32 {sT0}, {sT0}, {L_X0}
v_lshlrev_b32 {vCi}, 4, v0
v_add_u32 {vGx}, {sT0}, {vCi}
v_and_b32 v{vGw}, 0x1ff, {vCi}
s_and_b32 {sT0}, {sR}, 1
s_lshl_b32 {sT0}, {sT0}, 9
v_add_u32 v{vGw}, {sT0}, v{vGw}
v_xor_b32 v{vGw+1}, 0x200, v{vGw}
v_add_u32 v{vGw}, {L_GW}, v{vGw}
v_add_u32 v{vGw+1}, {L_GW}, v{vGw+1}
v_and_b32 {vQo}, 31, v0
v_lshlrev_b32 {vYo}, 7, {vQo}
v_lshlrev_b32 {vQo}, 3, {vQo}
v_lshrrev_b32 {vFo}, 5, v0
v_lshl_add_u32 {vQo}, {vFo}, 12, {vQo}
v_lshlrev_b32 {vFo}, 3, v0
s_lshl4_add_u32 {sBo}, {sG}, {sW}
s_lshl_b32 {sBo}, {sBo}, 5
s_add_u32 {sBo}, {sBo}, {sR}
s_lshl_b32 {sBo}, {sBo}, 6
s_add_u32 {sBo}, {sBo}, {WS_B}
v_lshl_add_u32 {vBo}, {vN}, 13, v9
s_lshl_b32 {sSo}, {sG}, 7
s_add_u32 {sSo}, {sSo}, {sR}
s_lshl3_add_u32 {sSo}, {sSo}, {WS_S}
v_lshlrev_b32 {vSo}, 8, {vN}
s_lshl3_add_u32 {sBi}, {sH}, {sMT}
s_lshl_b32 {sBi}, {sBi}, 10
s_add_u32 {sBi}, {sBi}, {WS_B}
s_add_u32 {sBi2}, {sBi}, 4096
s_lshl1_add_u32 {sSi}, {sH}, {sMT}
s_lshl_b32 {sSi}, {sSi}, 7
s_add_u32 {sSi}, {sSi}, {WS_S}
v_lshl_add_u32 {vBi}, {vN}, 6, v9
v_lshlrev_b32 {vSi}, 3, {vN}
s_lshl3_add_u32 {sOo}, {sG}, {sC}
s_lshl2_add_u32 {sOo}, {sOo}, {sHH}
s_lshl_b32 {sCi}, {sOo}, 11
s_add_u32 {sCi}, {sCi}, {WS_C}
s_lshl_b32 {sOo}, {sOo}, 5
s_getreg_b32 {sSig}, hwreg(HW_REG_XCC_ID, 0, 3)
s_add_u32 {sSig}, {sSig}, 1
s_lshl_b32 {sEg}, {sG}, 12
s_add_u32 {sEg}, {sEg}, {WS_E}
s_mov_b32 {sSpin}, {spin}
s_mov_b32 {sCS}, {fbits(LOG2E * 128 ** -0.5)}
s_movk_i32 {sTM}, 0x3ff
s_waitcnt lgkmcnt(0)
s_lshl3_add_u32 {sQo}, {sG}, {sW}
s_lshl_b32 {sQo}, {sQo}, 5
s_add_u32 {sQo}, {sQo}, {sB}
s_lshl_b32 {sQo}, {sQo}, 8
s_lshl3_add_u32 {sFo}, {sG}, {sHH}
s_lshl4_add_u32 {sFo}, {sFo}, {sW}
s_lshl_b32 {sFo}, {sFo}, 9
s_add_u32 {sFo}, {sFo}, {WS_A + 32768}
s_add_u32 {sFo2}, {sFo}, 4096""")
    e(srd(RWS, PWS, WS_END) + srd(ROUT, POUT, 8192))
    if stamps: e("v_writelane_b32 v255, s98, 0")
    stamp()
    e("; ---- stage A")
    lds_wait(F_PROG, P["x0"])
    stamp()
    WF, XF, D = 32, 64, 96
    for t in range(8):
        trfrag(WF + 4*t, vAa, t*4096, 2048)
        e(f"ds_read2_b64 v[{XF+4*t}:{XF+4*t+3}], v{vXa} offset0:{t*8} offset1:{t*8+4}")
        if t >= 3:
            e("s_waitcnt lgkmcnt(9)"); mfma(D, WF + 4*(t-3), XF + 4*(t-3), t == 3)
    for t in range(5, 8):
        e(f"s_waitcnt lgkmcnt({3*(7-t)})"); mfma(D, WF + 4*t, XF + 4*t, False)
    setexec(MA); e(f"s_nop 5\nbuffer_store_dwordx4 v[{D}:{D+3}], {vAo}, {WS}, {sAo} offen {'' if fast else 'sc1'}\ns_mov_b64 exec, -1")
    stamp()
    lds_wait(F_PROG, P["x1"])
    e(f"""ds_read_b128 v[32:35], {vGx}
ds_read_b128 v[36:39], {vGx} offset:{L_X1 - L_X0}
ds_read_b128 v[40:43], v{vGw}
ds_read_b128 v[44:47], v{vGw+1}""")
    signal(F_A)
    e("s_waitcnt lgkmcnt(0)")
    for j in range(8):
        e(f"""v_lshlrev_b32 v54, 16, v{32+j}
v_and_b32 v55, 0xffff0000, v{32+j}
v_lshlrev_b32 v56, 16, v{40+j}
v_and_b32 v57, 0xffff0000, v{40+j}
v_mul_f32 v54, v54, v56
v_mul_f32 v55, v55, v57
v_cvt_pk_bf16_f32 v54, v54, v55
v_and_b32 v55, 0xffff0000, v54
v_lshlrev_b32 v54, 16, v54""")
        e("v_add_f32 v52, v54, v55" if j == 0 else "v_add_f32 v52, v52, v54\nv_add_f32 v52, v52, v55")
    for ctl in ("row_shr:1 bound_ctrl:0", "row_shr:2 bound_ctrl:0", "row_shr:4 bound_ctrl:0", "row_shr:8 bound_ctrl:0", "row_bcast:15 row_mask:0xa"):
        e(f"s_nop 1\nv_add_f32_dpp v52, v52, v52 {ctl}")
    e(f"""v_cvt_pk_bf16_f32 v52, v52, v52
v_lshlrev_b32 v52, 16, v52
v_mul_f32 v52, {fbits(-LOG2E)}, v52
v_exp_f32 v52, v52
s_lshl_b32 {sT0}, {sW}, 3
v_add_f32 v52, 1.0, v52
v_rcp_f32 v52, v52
v_lshrrev_b32 v30, 5, v0
v_cvt_pk_bf16_f32 v52, v52, v52
v_lshlrev_b32 v52, 16, v52
v_lshl_add_u32 v30, v30, 2, v1
v_add_u32 v30, {sT0}, v30
s_mov_b32 exec_lo, 0x80000000
s_mov_b32 exec_hi, 0x80000000
ds_write_b32 v30, v52 offset:{O_G}
s_mov_b64 exec, -1""")
    evalw = f"""v_sub_u32 v34, v33, v32
v_cmp_eq_u32 vcc, {sSig}, v34
v_add_u32 v34, -1, v34
s_cmp_eq_u32 vcc_lo, -1
s_cselect_b32 {sPure}, {1 if fast else 0}, 0
v_cmp_gt_u32 vcc, 8, v34
s_cmp_eq_u32 vcc_lo, -1"""
    e(f"""; ---- arrival of the group, from the loader's in-stream copy; stage-C words carry X + 1 of their consumer in the low ten mantissa bits
v_and_b32 v35, 31, v0
v_lshl_add_u32 v35, v35, 2, v1
s_lshl_b32 {sT0}, {sG}, 7
v_add_u32 v36, {sT0}, v35
s_lshl3_add_u32 {sT0}, {sMT}, {sNH}
s_lshl4_add_u32 {sT0}, {sT0}, {sC}
v_and_b32 v30, 1, v0
v_lshrrev_b32 v37, 2, {vN}
v_lshl_add_u32 v30, v37, 2, v30
v_lshl_add_u32 v30, v30, 3, {sT0}
v_lshl_add_u32 v30, v30, 2, v1""")
    lds_wait(F_PROG, P["chk"], f"ds_read_b32 v33, v35 offset:{O_Y}\nds_read_b32 v32, v36 offset:{O_X}\nds_read_b32 {vTag}, v30 offset:{O_X}")
    e(f"""v_readlane_b32 {sTag}, v32, {sR}
v_add_u32 {vTag}, 1, {vTag}
{evalw}
s_cbranch_scc0 L_chkslow
L_chkback:
s_add_u32 {sY}, {sTag}, {sSig}
s_add_u32 {sTag}, {sTag}, 1
s_and_b32 {sTag}, {sTag}, {sTM}
s_cmp_eq_u32 {sPure}, 0
s_cbranch_scc1 L_impure
L_pure:""")
    late = [f"""; the group was not complete when the loader looked
L_chkslow:
buffer_load_dword v33, {vYo}, {WS}, {sEg} offen sc1
s_waitcnt vmcnt(0)
{evalw}
s_cbranch_scc1 L_chkback
s_sleep {backoff}
s_sub_u32 {sSpin}, {sSpin}, 1
s_cbranch_scc0 L_chkslow
s_mov_b32 {sSpin}, 0
s_branch L_chkback
L_impure:
v_mov_b32 v36, v33
s_mov_b32 exec_lo, {hex(MA & 0xffffffff)}
s_mov_b32 exec_hi, {hex(MA >> 32)}
buffer_store_dwordx4 v[{D}:{D+3}], {vAo}, {WS}, {sAo} offen sc1
s_mov_b64 exec, -1
s_cmp_eq_u32 {sW}, 0
s_cbranch_scc0 L_imp1
v_mov_b32 v32, -1
v_mov_b32 v33, -1
v_mov_b32 v34, -1
v_mov_b32 v35, -1
s_lshl_b32 {sT0}, {sSlot}, 10
s_add_u32 {sT0}, {sT0}, {WS_B}
buffer_store_dwordx4 v[32:35], {vCi}, {WS}, {sT0} offen sc1
s_lshl_b32 {sT0}, {sSlot}, 5
s_add_u32 {sT0}, {sT0}, {WS_S}
s_mov_b64 exec, 3
buffer_store_dwordx4 v[32:35], {vCi}, {WS}, {sT0} offen sc1
s_mov_b64 exec, -1
L_imp1:
s_waitcnt vmcnt(0)
s_mov_b64 exec, 1
ds_add_rtn_u32 v2, v1, v12 offset:{F_GO}
s_waitcnt lgkmcnt(0)
v_readfirstlane_b32 {sT0}, v2
s_cmp_eq_u32 {sT0}, 3
s_cbranch_scc0 L_imp2
s_lshl_b32 {sT0}, {sSlot}, 7
s_add_u32 {sT0}, {sT0}, {WS_E}
v_mov_b32 v32, {sY}
v_mov_b32 v33, 0
buffer_store_dword v32, v33, {WS}, {sT0} offen offset:4 sc1
L_imp2:
s_mov_b64 exec, -1
L_imp3:
buffer_load_dword v33, {vYo}, {WS}, {sEg} offen offset:4 sc1
s_waitcnt vmcnt(0)
v_cmp_eq_u32 vcc, v36, v33
s_cmp_eq_u32 vcc_lo, -1
s_cbranch_scc1 L_pure
s_sleep {backoff}
s_sub_u32 {sSpin}, {sSpin}, 1
s_cbranch_scc0 L_imp3
s_mov_b32 {sSpin}, 0
s_branch L_pure"""]
    stamp()
    def store2(ins):
        a, b = e.lab("S"), e.lab("S")
        e(f"s_cmp_eq_u32 {sPure}, 0\ns_cbranch_scc1 {a}\n{ins}\n{b}:")
        late.append(f"{a}:\n{ins} sc1\ns_branch {b}")
    def retry(loop, done):
        e(f"s_cbranch_vccz {done}\ns_mov_b64 exec, vcc\ns_sub_u32 {sSpin}, {sSpin}, 1\ns_cbranch_scc0 {loop}\ns_mov_b32 {sSpin}, 0\n{done}:\ns_mov_b64 exec, -1")
    e(f"""; ---- gather q and the FFN sums
L_gA:
buffer_load_dwordx2 v[32:33], {vQo}, {WS}, {sQo} offen sc1
buffer_load_dwordx2 v[34:35], {vQo}, {WS}, {sQo} offen offset:2048 sc1
buffer_load_dwordx2 v[36:37], {vFo}, {WS}, {sFo} offen sc1
buffer_load_dwordx2 v[38:39], {vFo}, {WS}, {sFo} offen offset:2048 sc1
buffer_load_dwordx2 v[40:41], {vFo}, {WS}, {sFo2} offen sc1
buffer_load_dwordx2 v[42:43], {vFo}, {WS}, {sFo2} offen offset:2048 sc1
s_waitcnt vmcnt(0)
v_max3_u32 v44, v32, v33, v34
v_max3_u32 v45, v35, v36, v37
v_max3_u32 v46, v38, v39, v40
v_max3_u32 v47, v41, v42, v43
v_max3_u32 v44, v44, v45, v46
v_max_u32 v44, v44, v47
v_cmp_eq_u32 vcc, -1, v44""")
    retry("L_gA", "L_gAdone")
    stamp()
    e(f"""v_add_f32 v32, v32, v34
v_add_f32 v33, v33, v35
v_cvt_pk_bf16_f32 v32, v32, v33
s_mul_i32 {sT0}, {sW}, 272
v_lshl_add_u32 v30, v0, 2, v1
v_add_u32 v30, {sT0}, v30
ds_write_b32 v30, v32 offset:{O_Q}""")
    signal(F_Q)
    e(f"""; h = silu(gate) * up
v_add_f32 v36, v36, v38
v_add_f32 v37, v37, v39
v_add_f32 v40, v40, v42
v_add_f32 v41, v41, v43
v_cvt_pk_bf16_f32 v36, v36, v37
v_cvt_pk_bf16_f32 v40, v40, v41
v_and_b32 v37, 0xffff0000, v36
v_lshlrev_b32 v36, 16, v36
v_and_b32 v41, 0xffff0000, v40
v_lshlrev_b32 v40, 16, v40
v_mul_f32 v38, {fbits(-LOG2E)}, v36
v_mul_f32 v39, {fbits(-LOG2E)}, v37
v_exp_f32 v38, v38
v_exp_f32 v39, v39
s_nop 0
v_add_f32 v38, 1.0, v38
v_add_f32 v39, 1.0, v39
v_rcp_f32 v38, v38
v_rcp_f32 v39, v39
s_nop 0
v_mul_f32 v36, v36, v38
v_mul_f32 v37, v37, v39
v_cvt_pk_bf16_f32 v36, v36, v37
v_and_b32 v37, 0xffff0000, v36
v_lshlrev_b32 v36, 16, v36
v_mul_f32 v36, v36, v40
v_mul_f32 v37, v37, v41
v_cvt_pk_bf16_f32 v36, v36, v37
v_lshrrev_b32 v29, 5, v0
s_lshl_b32 {sT0}, {sW}, 1
v_add_u32 v29, {sT0}, v29
v_mul_u32_u24 v29, 144, v29
v_and_b32 v30, 31, v0
v_lshl_add_u32 v29, v30, 2, v29
v_add_u32 v29, v29, v1
ds_write_b32 v29, v36 offset:{O_H}
v_and_b32 v30, 3, v0
v_lshl_add_u32 v30, v30, 2, v1
s_lshl_b32 {sT0}, {sNH}, 5
s_add_u32 {sT0}, {sT0}, {sMT}
s_lshl_b32 {sT0}, {sT0}, 3
v_add_u32 v29, {sT0}, v{vPa}""")
    KF, QF, S = 32, 96, 112
    def kreads(j):
        return "\n".join(f"ds_read_b128 v[{KF+16*j+4*t}:{KF+16*j+4*t+3}], v{vKa+t} offset:{j*16384}" for t in range(4))
    lds_wait(F_PROG, kdone[7])
    e(kreads(0) + "\n" + kreads(1))
    lds_wait(F_Q, 4)
    for t in range(4):
        e(f"ds_read_b128 v[{QF+4*t}:{QF+4*t+3}], v{vQa} offset:{O_Q + t*64}")
    for t in range(4):
        e(f"s_waitcnt lgkmcnt({3-t})")
        for j in range(2): mfma(S + 4*j, KF + 16*j + 4*t, QF + 4*t, t == 0)
    for j in (2, 3):
        lds_wait(F_PROG, kdone[4*j + 3], kreads(j))
        if j == 3: stamp()
        for t in range(4): mfma(S + 4*j, KF + 16*j + 4*t, QF + 4*t, t == 0)
    e(f"v_max3_f32 v32, v{S}, v{S+1}, v{S+2}\nv_max3_f32 v33, v{S+3}, v{S+4}, v{S+5}\nv_max3_f32 v32, v32, v{S+6}, v{S+7}")
    e(f"v_max3_f32 v33, v33, v{S+8}, v{S+9}\nv_max3_f32 v32, v32, v{S+10}, v{S+11}\nv_max_f32 v32, v32, v33")
    setexec(MB)
    e(f"v_max3_f32 v32, v32, v{S+12}, v{S+13}\nv_max3_f32 v32, v32, v{S+14}, v{S+15}")
    e(f"ds_max_f32 v30, v32 offset:{O_MAX}"); signal(F_MX)
    lds_wait(F_MX, 4, f"ds_read_b32 v32, v30 offset:{O_MAX}")
    vMC = 128
    e(f"v_mul_f32 v{vMC}, {sCS}, v32")
    for i in range(16): e(f"v_fma_f32 v{S+i}, v{S+i}, {sCS}, -v{vMC}")
    for i in range(16): e(f"v_exp_f32 v{S+i}, v{S+i}")
    setexec(MB)
    for i in range(8): e(f"v_cvt_pk_bf16_f32 v{32+i}, v{S+2*i}, v{S+2*i+1}")
    for j in range(4): e(f"ds_write_b64 v29, v[{32+2*j}:{33+2*j}] offset:{O_P + j*512}")
    signal(F_P)
    stamp()
    PF = 96
    e("; ---- P fragments, row sums (first wave), stats record\nv_mov_b32 v32, 0x3f803f80\nv_mov_b32 v33, 0x3f803f80\nv_mov_b32 v34, 0x3f803f80\nv_mov_b32 v35, 0x3f803f80")
    lds_wait(F_P, 4)
    for kk in range(8): e(f"ds_read_b128 v[{PF+4*kk}:{PF+4*kk+3}], v{vPa} offset:{O_P + kk*256}")
    e(f"s_cmp_eq_u32 {sW}, 0\ns_cbranch_scc0 L_nostat\ns_waitcnt lgkmcnt(0)")
    for kk in range(8): mfma(36, 32, PF + 4*kk, kk == 0)
    e(f"s_nop 7\nv_mov_b32 v{vMC+1}, v36\ns_mov_b64 exec, 0xf")
    store2(f"buffer_store_dwordx2 v[{vMC}:{vMC+1}], {vSo}, {WS}, {sSo} offen"); e("s_mov_b64 exec, -1\nL_nostat:")
    WOF, W2F, HF, D2, vGt = 132, 164, 180, 188, 196
    lds_wait(F_PROG, P["VW"])
    stamp()
    for j in range(2):
        for t in range(2): trfrag(W2F + 8*j + 4*t, vWa + j, L_W2 - L_WO + t*4096, 2048)
    for t in range(2):
        e(f"ds_read2_b64 v[{HF+4*t}:{HF+4*t+3}], v{vHa} offset0:{O_H//8 + t*8} offset1:{O_H//8 + t*8 + 4}")
    e(f"ds_read_b32 v{vGt}, v{vGa} offset:{O_G}\ns_waitcnt lgkmcnt(0)")
    for t in range(2):
        for j in range(2): mfma(D2 + 4*j, W2F + 8*j + 4*t, HF + 4*t, t == 0)
    e(f"""v_sub_f32 v32, 1.0, v{vGt}
v_cvt_pk_bf16_f32 v32, v32, v32
v_lshlrev_b32 v32, 16, v32
v_and_b32 v33, 2, v0
v_cmp_eq_u32 vcc, 0, v33
s_nop 2""")
    for i in range(4): e(f"v_cndmask_b32 v{D2+i}, v{D2+i}, v{D2+4+i}, {mOdd}")
    for i in range(4): e(f"v_mul_f32 v{D2+i}, v{D2+i}, v32")
    for i in range(4): e(f"v_cndmask_b32 v{D2+i}, 0, v{D2+i}, vcc")
    VF, O = 32, 200
    for k0, k1 in ((0, 3), (3, 5), (5, 7), (7, 8)):
        if k1 == 8 and bar: e("s_barrier")
        else: lds_wait(F_PROG, P_V(k1))
        if k1 == 8: stamp()
        for kq in range(k0, k1):
            for m in range(2): trfrag(VF + 8*(kq - k0) + 4*m, vVa + m, kq*8192, 4096)
        for kq in range(k0, k1):
            for m in range(2):
                e(f"s_waitcnt lgkmcnt({(k1 - 1 - kq)*4 + (2 if m == 0 else 0)})")
                mfma(O + 4*m, VF + 8*(kq - k0) + 4*m, PF + 4*kq, kq == 0)
    setexec(MB)
    e("s_nop 4")
    for i in range(4): e(f"v_cvt_pk_bf16_f32 v{32+i}, v{O+2*i}, v{O+2*i+1}")
    store2(f"buffer_store_dwordx4 v[32:35], {vBo}, {WS}, {sBo} offen"); e("s_mov_b64 exec, -1")
    stamp()
    BF, ST, DD = 40, 56, 64
    gB = f"""buffer_load_dwordx2 v[{ST}:{ST+1}], {vSi}, {WS}, {sSi} offen sc1
buffer_load_dwordx4 v[{BF}:{BF+3}], {vBi}, {WS}, {sBi} offen sc1
buffer_load_dwordx4 v[{BF+4}:{BF+7}], {vBi}, {WS}, {sBi} offen offset:2048 sc1
buffer_load_dwordx4 v[{BF+8}:{BF+11}], {vBi}, {WS}, {sBi2} offen sc1
buffer_load_dwordx4 v[{BF+12}:{BF+15}], {vBi}, {WS}, {sBi2} offen offset:2048 sc1"""
    e("; ---- stage B: the wo block is still in flight; the first gather round returns with it\n" + gB)
    if bar: e("s_barrier")
    else: lds_wait(F_PROG, ops - 4)
    for t in range(4):
        if t == 3: e("s_waitcnt lgkmcnt(8)\ns_barrier")
        for j in range(2): trfrag(WOF + 16*j + 4*t, vWa + j, t*4096, 2048)
    e(f"s_branch L_gB1\nL_gB:\n{gB}\nL_gB1:\ns_waitcnt vmcnt(0)")
    e(f"v_max3_u32 v58, v{BF}, v{BF+1}, v{BF+2}\nv_max3_u32 v59, v{BF+3}, v{BF+4}, v{BF+5}\nv_max3_u32 v60, v{BF+6}, v{BF+7}, v{BF+8}")
    e(f"v_max3_u32 v58, v58, v{BF+9}, v{BF+10}\nv_max3_u32 v59, v59, v{BF+11}, v{BF+12}\nv_max3_u32 v60, v60, v{BF+13}, v{BF+14}")
    e(f"v_max3_u32 v58, v58, v{BF+15}, v{ST}\nv_max3_u32 v59, v59, v60, v{ST+1}\nv_max_u32 v58, v58, v59\nv_cmp_eq_u32 vcc, -1, v58")
    retry("L_gB", "L_gBdone")
    stamp()
    e("s_waitcnt lgkmcnt(0)")
    for t in range(4):
        for j in range(2): mfma(DD + 4*j, WOF + 16*j + 4*t, BF + 4*t, t == 0)
    X1, X2 = "quad_perm:[1,0,3,2] row_mask:0xf bank_mask:0xf", "quad_perm:[2,3,0,1] row_mask:0xf bank_mask:0xf"
    e(f"""; weight of split s: g * 2^(m_s - M) / sum_s 2^(m_s - M) l_s (v58), the neighbour's in v59
v_max_f32_dpp v58, v{ST}, v{ST} {X1}
s_nop 1
v_max_f32_dpp v58, v58, v58 {X2}
v_sub_f32 v58, v{ST}, v58
v_exp_f32 v58, v58
s_nop 0
v_mul_f32 v59, v58, v{ST+1}
v_mul_f32 v58, v58, v{vGt}
s_nop 0
v_add_f32_dpp v59, v59, v59 {X1}
s_nop 1
v_add_f32_dpp v59, v59, v59 {X2}
v_rcp_f32 v59, v59""")
    for i in range(4): e(f"v_cndmask_b32 v{72+i}, v{DD+4+i}, v{DD+i}, {mOdd}")
    e("v_mul_f32 v58, v58, v59")
    for i in range(4): e(f"v_cndmask_b32 v{DD+i}, v{DD+i}, v{DD+4+i}, {mOdd}")
    e(f"v_mov_b32_dpp v59, v58 {X1}")
    for i in range(4): e(f"v_fma_f32 v{DD+i}, v{DD+i}, v58, v{D2+i}")
    for i in range(4): e(f"v_fmac_f32_dpp v{DD+i}, v{72+i}, v59 {X1}")
    for i in range(4): e(f"v_add_f32_dpp v{DD+4+i}, v{DD+i}, v{DD+i} {X2}")
    setexec(MC)
    for i in range(4): e(f"v_bfi_b32 v{DD+4+i}, {sTM}, {vTag}, v{DD+4+i}")
    e(f"buffer_store_dwordx4 v[{DD+4}:{DD+7}], {vCo}, {WS}, {sCo} offen sc1\ns_mov_b64 exec, -1")
    stamp()
    e(f"s_cmp_eq_u32 {sW}, 0")
    e("s_cbranch_scc0 " + ("L_stampout" if stamps and echo is None else "L_end"))
    e(f"""; ---- stage C (first compute wave); a round issued before the own store is through would come back too early
s_waitcnt vmcnt(0)
L_gC:
buffer_load_dwordx4 v[32:35], {vCi}, {WS}, {sCi} offen sc1
buffer_load_dwordx4 v[36:39], {vCi}, {WS}, {sCi} offen offset:1024 sc1
s_waitcnt vmcnt(0)
; a matching tag leaves zero bits behind""")
    for i in range(8): e(f"v_xor_b32 v{32+i}, {sTag}, v{32+i}")
    e(f"v_or3_b32 v40, v32, v33, v34\nv_or3_b32 v41, v35, v36, v37\nv_or3_b32 v40, v40, v38, v39\nv_bitop3_b32 v40, v40, v41, {sTM} bitop3:0xa8\nv_cmp_ne_u32 vcc, 0, v40")
    retry("L_gC", "L_gCdone")
    stamp()
    for i in range(4): e(f"v_add_f32 v{32+i}, v{32+i}, v{36+i}")
    e(f"""; rows 0..3 <- registers 0..3 (transposing reduction), then the four quads of each row
s_nop 0
v_permlane32_swap_b32 v32, v34
v_permlane32_swap_b32 v33, v35
s_nop 0
v_add_f32 v32, v32, v34
v_add_f32 v33, v33, v35
s_lshl2_add_u32 {sEg}, {sSlot}, {WS_X}
v_mov_b32 v41, {sY}
v_permlane16_swap_b32 v32, v33
v_mov_b32 v42, 0
v_add_f32 v32, v32, v33
s_nop 1
v_add_f32_dpp v32, v32, v32 row_ror:4 row_mask:0xf bank_mask:0xf
s_nop 1
v_add_f32_dpp v32, v32, v32 row_ror:8 row_mask:0xf bank_mask:0xf""")
    setexec(MB)
    e(f"""v_cvt_pk_bf16_f32 v32, v32, v32
buffer_store_short v32, {vOo}, {R(ROUT)}, {sOo} offen
s_mov_b64 exec, 1
buffer_store_dword v41, v42, {WS}, {sEg} offen""")
    if stamps:
        e("s_mov_b64 exec, -1\ns_waitcnt vmcnt(0)")
        stamp()
        if echo is not None:
            wg, i0, i1, mult = echo
            e(f"""s_cmp_eq_u32 s2, {wg}
s_cbranch_scc0 L_end
v_readlane_b32 s70, v255, {i0}
v_readlane_b32 s71, v255, {i1}
s_nop 3
s_sub_u32 s70, s71, s70
s_mul_i32 s70, s70, {mult}
L_echo:
s_memrealtime s[72:73]
s_waitcnt lgkmcnt(0)
s_sub_u32 s72, s72, s96
s_cmp_lt_u32 s72, s70
s_cbranch_scc1 L_echo""")
        else:
            e("L_stampout:")
            e(f"s_load_dwordx2 s[4:5], s[0:1], 96\ns_mov_b32 s6, {256<<20}\ns_mov_b32 s7, 0x20000\nv_lshlrev_b32 v2, 2, v0")
            e(f"s_mul_i32 s8, s2, 5\ns_add_u32 s8, s8, s95\ns_lshl_b32 s8, s8, 8\ns_add_u32 s8, s8, {STAMP_OFF}\ns_waitcnt lgkmcnt(0)")
            e(f"buffer_store_dword v255, v2, s[4:7], s8 offen")
    e("s_endpgm")
    for t in late: e(t)
    e("L_end:\ns_endpgm")
    nv = 256 if stamps else 208
    head = ["; fused gated attention + SwiGLU decode step: 256 workgroups, 1 LDS-DMA loader wave + 4 compute waves each",
            f"; @launch grid=(256,1,1) block=(320,1,1) lds={LDS_BYTES}",
            '.amdgcn_target "amdgcn-amd-amdhsa--gfx950"', ".text", f".globl {NAME}_kernel", ".p2align 8",
            f".type {NAME}_kernel,@function", f"{NAME}_kernel:"]
    foot = ['.section .rodata,"a"', ".p2align 6", f".amdhsa_kernel {NAME}_kernel",
            f"  .amdhsa_next_free_vgpr {nv}", "  .amdhsa_next_free_sgpr 102", f"  .amdhsa_accum_offset {nv}",
            "  .amdhsa_group_segment_fixed_size 0", "  .amdhsa_kernarg_size 104", "  .amdhsa_user_sgpr_count 2",
            "  .amdhsa_user_sgpr_kernarg_segment_ptr 1", "  .amdhsa_system_sgpr_workgroup_id_x 1",
            "  .amdhsa_float_denorm_mode_32 3", ".end_amdhsa_kernel"]
    return "\n".join(head + e.L + foot) + "\n"

if __name__ == "__main__":
    out = sys.argv[1] if len(sys.argv) > 1 else f"cdna_kernels/{NAME}.s"
    open(out, "w").write(gen())
```

```python
import sys, struct, re
NAME = "gated_mix__sliding_block_cached__glu_gated_swiglu__decode"
STAMP_OFF = 128 << 20
NWAVES = 5

L_K = 0
L_V = 65536
L_A = 98304
L_WO = 131072
L_X0 = L_WO
L_X1 = L_X0 + 4 * 1040
L_GW = L_X1 + 4 * 1040
L_W2 = 147456
L_M = 155648
F_PROG, F_GO, F_A, F_Q, F_MX, F_P = 0, 4, 8, 12, 16, 20
O_MAX = 32
O_G = 64
O_Q = 128
O_H = 1280
O_P = 2560
O_X = 4608
O_Y = 5632
O_JUNK = 6144
LDS_BYTES = 163840
WS_A = 0
WS_B = 512 << 10
WS_S = 768 << 10
WS_X = 792 << 10
WS_E = 800 << 10
WS_C = 1 << 20
WS_END = WS_C + (512 << 10)
LOG2E = 1.4426950408889634
FF_BYTES = 512 * 1792 * 2

HEADER = """
"""

def fbits(x):
    return "0x%08x" % struct.unpack("<I", struct.pack("<f", x))[0]

class G:
    def __init__(self):
        self.L = []
        self.nlab = 0
    def __call__(self, s):
        for line in s.split("\n"):
            line = line.strip()
            if line:
                self.L.append(line if line.endswith(":") or line.startswith(";") else "    " + line)
    def lab(self, p="L"):
        self.nlab += 1
        return f"{p}_{self.nlab}"

def gen(k=6, stamps=False, only=None, spin=2000000, echo=None, fast=True, nocomp=False, lst=False, gst=(), chk_g=13, cw_g=28, backoff=8, bar=True, prio=0, wo_tail=4, sched=None):
    if echo is not None: stamps = True
    W = 4 * k
    e = G()
    PX, PK, PV, PWQ, PWO, PW1, PW3, PW2, PG, POUT, PWS = 4, 6, 8, 10, 12, 16, 18, 20, 22, 24, 28
    RA, RB, RWS = 32, 36, 40
    def R(b): return f"s[{b}:{b+3}]"
    sW, sG, sR, sHH, sC, sB = "s3", "s44", "s45", "s46", "s47", "s48"
    sT0, sT1, sT2, sT3 = "s49", "s50", "s51", "s52"
    nst = [0]
    def stamp():
        if stamps:
            i = nst[0]; nst[0] += 1
            if only is None or i in only: e(f"s_memrealtime s[96:97]\ns_waitcnt lgkmcnt(0)\nv_writelane_b32 v255, s96, {i}")
    def srd(d, p, n):
        return f"s_mov_b64 s[{d}:{d+1}], s[{p}:{p+1}]\ns_mov_b32 s{d+2}, {n}\ns_mov_b32 s{d+3}, 0x20000\n"
    def lds_wait(off, n, also=""):
        l = e.lab("W")
        e(f"{l}:\nds_read_b32 v2, v1 offset:{off}\n{also}\ns_waitcnt lgkmcnt(0)\nv_readfirstlane_b32 {sT0}, v2\ns_cmp_ge_i32 {sT0}, {n}\ns_cbranch_scc0 {l}")
    def signal(off):
        e(f"s_mov_b64 exec, 1\nds_add_u32 v1, v12 offset:{off}\ns_mov_b64 exec, -1")
    def mfma(d, a, b, first):
        e(f"v_mfma_f32_16x16x32_bf16 v[{d}:{d+3}], v[{a}:{a+3}], v[{b}:{b+3}], " + ("0" if first else f"v[{d}:{d+3}]"))
    def trfrag(r, v, off, half):
        e(f"ds_read_b64_tr_b16 v[{r}:{r+1}], v{v} offset:{off}\nds_read_b64_tr_b16 v[{r+2}:{r+3}], v{v} offset:{off + half}")

    if stamps: e("s_memrealtime s[98:99]")
    e(f"""s_load_dwordx16 s[4:19], s[0:1], 0
s_load_dwordx8 s[20:27], s[0:1], 64
s_load_dwordx2 s[28:29], s[0:1], 96
v_lshrrev_b32 v2, 6, v0
s_cmp_ge_u32 s2, 256
v_readfirstlane_b32 {sW}, v2
s_cbranch_scc1 L_end
v_mov_b32 v1, {L_M}
v_and_b32 v0, 63, v0
s_and_b32 {sG}, s2, 7
s_lshr_b32 {sR}, s2, 3
s_sub_u32 {sW}, {sW}, 1
s_cbranch_scc1 L_loader
s_getpc_b64 s[64:65]
L_pc:
s_lshl2_add_u32 {sT0}, {sR}, {sW}
s_lshl_b32 {sT0}, {sT0}, 6
s_min_u32 {sT0}, {sT0}, L_end - L_pc
s_load_dword s66, s[64:65], {sT0}
s_barrier
s_branch L_compute""")

    sStr, sOff, sKV, sWo, sW2, s8R, sCnt, sKH, sRot, sU = "s53", "s54", "s55", "s56", "s57", "s58", "s59", "s60", "s67", "s68"
    e(f"""L_loader:
s_and_b32 {sT0}, {sR}, 28
s_lshl_b32 {sT0}, {sT0}, 1
s_add_u32 {sT0}, {sT0}, {sG}
s_sub_u32 {sT0}, {sT0}, 32
s_cmp_lt_u32 {sT0}, 28
s_cselect_b32 s{RA+2}, {FF_BYTES}, 0
s_lshr_b32 {sT1}, {sR}, 1
s_lshl3_add_u32 {sT1}, {sG}, {sT1}
s_movk_i32 {sStr}, 3584
s_cmp_lt_u32 {sR}, 16
s_cselect_b32 s{RA+2}, {4<<20}, s{RA+2}
s_cselect_b32 {sOff}, {sT1}, {sT0}
s_cselect_b32 {sStr}, 8192, {sStr}
s_and_b32 {sKH}, {sR}, 1
s_mul_i32 {sT0}, {sStr}, {sKH}
s_lshl1_add_u32 {sOff}, {sT0}, {sOff}
s_lshl_b32 {sOff}, {sOff}, 7
s_lshl_b32 {s8R}, {sStr}, 3
s_mov_b32 s{RA+3}, 0x20000
s_mov_b32 m0, {L_A}
v_lshrrev_b32 v5, 3, v0
v_and_b32 v6, 6, v5
v_and_b32 v7, 7, v0
v_xor_b32 v6, v6, v7
v_lshlrev_b32 v6, 4, v6
v_mad_u32_u24 v8, v5, {sStr}, v6
v_lshl_add_u32 v3, v0, 2, v1
v_mov_b32 v4, 0xff800000
v_cmp_gt_u32 vcc, 8, v0
s_mov_b64 exec, 0xfff
s_lshl_b32 s61, {sG}, 5
v_cndmask_b32 v4, v4, 0, vcc
ds_write_b32 v3, v4
s_mov_b64 exec, -1
s_add_u32 s61, s61, {sR}
s_lshl_b32 s70, s61, 7
s_add_u32 s70, s70, {WS_E}
s_lshl2_add_u32 s71, s61, {WS_X}
s_mov_b32 s{RWS+2}, {WS_END}
s_mov_b32 s{RWS+3}, 0x20000
s_lshl_b32 s62, s61, 11
s_lshl_b32 s63, s61, 10
s_add_u32 s63, s63, {WS_B}
s_lshl_b32 s61, s61, 5
s_add_u32 s61, s61, {WS_S}
s_and_b32 {sC}, {sR}, 7
s_lshr_b32 {sHH}, {sR}, 3
v_lshlrev_b32 v16, 4, v0
v_mov_b32 v20, -1
v_mov_b32 v21, -1
v_mov_b32 v22, -1
v_mov_b32 v23, -1
v_mov_b32 v3, {-W}""")
    if stamps: e("v_mov_b32 v255, 0\ns_mov_b32 s95, 4")
    e(f"""{f"s_setprio {prio}" if prio else ""}
s_bitcmp1_b32 {sR}, 1
s_waitcnt lgkmcnt(0)
s_barrier
s_cselect_b64 s[{RA}:{RA+1}], s[{PW3}:{PW3+1}], s[{PW1}:{PW1+1}]
s_cmp_lt_u32 {sR}, 16
s_cselect_b64 s[{RA}:{RA+1}], s[{PWQ}:{PWQ+1}], s[{RA}:{RA+1}]""")
    if stamps:
        e("v_writelane_b32 v255, s98, 0"); nst[0] = 1
        if lst: stamp()
    clears = f"""; sentinel words (plain stores, they stay in this XCD's L2): own A record, slice r of the group's B area and of its stats
s_load_dword s65, s[{PWS}:{PWS+1}], s71
s_mov_b64 s[{RWS}:{RWS+1}], s[{PWS}:{PWS+1}]
buffer_store_dwordx4 v[20:23], v16, {R(RWS)}, s62 offen
buffer_store_dwordx4 v[20:23], v16, {R(RWS)}, s62 offen offset:1024
buffer_store_dwordx4 v[20:23], v16, {R(RWS)}, s63 offen
s_mov_b64 exec, 3
buffer_store_dwordx4 v[20:23], v16, {R(RWS)}, s61 offen
s_mov_b64 exec, -1
"""
    arrive = f"""; arrival: Y = X + 1 + xcc once the sentinels are in place, X being whatever the word held at entry (the end of the launch sets X = Y).
s_getreg_b32 s66, hwreg(HW_REG_XCC_ID, 0, 3)
v_mov_b32 v25, 0
s_waitcnt lgkmcnt(0)
s_add_u32 s65, s65, s66
s_add_u32 s65, s65, 1
v_mov_b32 v24, s65
s_mov_b64 exec, 1
buffer_store_dword v24, v25, {R(RWS)}, s70 offen sc1
s_mov_b64 exec, -1
"""
    check = f"""; copy of all X words and of the group's Y words for the compute waves
s_mov_b32 s71, {WS_X}
s_mov_b32 s69, m0
s_mov_b32 m0, {L_M + O_X}
v_lshlrev_b32 v17, 7, v0
buffer_load_dwordx4 v16, {R(RWS)}, s71 offen lds
s_mov_b32 m0, {L_M + O_Y}
s_lshl_b32 s71, {sG}, 12
s_add_u32 s71, s71, {WS_E}
s_mov_b32 exec_hi, 0
buffer_load_dword v17, {R(RWS)}, s71 offen sc1 lds
s_mov_b64 exec, -1
s_mov_b32 m0, s69
"""
    cwarm = f"""; read the own C in-box once (into unused LDS) so that its lines are in the memory-side cache when the partial sums arrive
s_lshl2_add_u32 s71, {sC}, {sHH}
s_lshl_b32 {sT0}, {sG}, 5
s_add_u32 s71, s71, {sT0}
s_lshl_b32 s71, s71, 11
s_add_u32 s71, s71, {WS_C}
s_mov_b32 s69, m0
s_mov_b32 m0, {L_M + O_JUNK}
s_nop 0
buffer_load_dwordx4 v16, {R(RWS)}, s71 offen lds
buffer_load_dwordx4 v16, {R(RWS)}, s71 offen offset:1024 lds
s_mov_b32 m0, s69
"""
    setup_x = srd(RB, PX, 8192) + f"""v_lshrrev_b32 v4, 5, v0
v_and_b32 v7, 31, v0
v_lshlrev_b32 v7, 4, v7
v_lshl_add_u32 v4, v4, 10, v7
v_lshl_add_u32 v9, v5, 10, v6
s_lshl_b32 {sT1}, {sKH}, 9
s_mov_b32 m0, {L_X0}
s_nop 0"""
    setup_k = srd(RB, PK, 64 << 20) + f"""s_lshr_b32 {sKV}, {sR}, 2
s_lshl3_add_u32 {sKV}, {sKV}, {sG}
s_lshl_b32 {sKV}, {sKV}, 4
s_and_b32 {sT0}, {sR}, 3
s_add_u32 {sKV}, {sKV}, {sT0}
s_add_u32 {sKV}, {sKV}, 12
s_lshl_b32 {sKV}, {sKV}, 16
; 256-byte rows, 4 per instruction: slot (row, pos) holds chunk pos ^ (row & 15) for K, pos ^ 2*(row & 7) for V
v_lshrrev_b32 v5, 4, v0
v_and_b32 v7, 15, v0
v_xor_b32 v6, v7, v5
v_lshlrev_b32 v6, 4, v6
v_lshl_add_u32 v10, v5, 8, v6
v_xor_b32 v11, 64, v10
v_xor_b32 v12, 0x80, v10
v_xor_b32 v13, 0xc0, v10
v_lshlrev_b32 v6, 1, v5
v_xor_b32 v6, v7, v6
v_lshlrev_b32 v6, 4, v6
v_lshl_add_u32 v14, v5, 8, v6
v_xor_b32 v15, 0x80, v14
s_lshl_b32 {sRot}, {sR}, 12
s_mov_b32 m0, {L_K}"""
    setup_v = f"""s_mov_b64 s[{RB}:{RB+1}], s[{PV}:{PV+1}]
s_mov_b32 m0, {L_V}
s_lshl_b32 {sT0}, {sC}, 7
s_lshl2_add_u32 {sWo}, {sG}, {sHH}
s_lshl_b32 {sWo}, {sWo}, 17
s_add_u32 {sWo}, {sWo}, {sT0}
s_lshl3_add_u32 {sT3}, {sHH}, {sG}
s_lshl_b32 {sW2}, {sT3}, 16
s_add_u32 {sW2}, {sW2}, {sT0}
s_mov_b64 s[{RA}:{RA+1}], s[{PW2}:{PW2+1}]
s_cmp_lt_u32 {sT3}, 28
s_cselect_b32 s{RA+2}, {FF_BYTES}, 0
s_mov_b32 {sU}, {L_W2}
"""
    waitA = "" if nocomp else f"; the stage-A block, x and gate_w have been read: their LDS may be overwritten\nL_waitA:\nds_read_b32 v2, v1 offset:{F_A}\ns_waitcnt lgkmcnt(0)\nv_readfirstlane_b32 {sT0}, v2\ns_cmp_ge_u32 {sT0}, 4\ns_cbranch_scc0 L_waitA"
    xgroup = f"buffer_load_dwordx4 v4, {R(RB)}, {sT1} offen lds\ns_add_u32 m0, m0, 1040\ns_add_u32 {sT1}, {sT1}, 2048\n" * 4
    def blkgroup(v, rs):
        return f"buffer_load_dwordx4 {v}, {R(rs)}, {sOff} offen nt lds\ns_add_u32 m0, m0, 1024\ns_add_u32 {sOff}, {sOff}, {s8R}\n" * 4
    def kvgroup(v0, msk):
        t = f"s_and_b32 {sRot}, {sRot}, 0xffff\ns_add_u32 {sOff}, {sKV}, {sRot}\n"
        for j in range(4):
            t += f"buffer_load_dwordx4 v{v0 + (j & msk)}, {R(RB)}, {sOff} offen offset:{j*1024} nt lds\n"
        return t + f"s_add_u32 m0, m0, 4096\ns_add_u32 {sRot}, {sRot}, 4096\n"
    w2load = f"s_mov_b32 m0, {sU}\ns_add_u32 {sU}, {sU}, 1024\nbuffer_load_dwordx4 v9, {R(RA)}, {sW2} offen nt lds\ns_add_u32 {sW2}, {sW2}, 8192\n"
    segs = [
        ("", blkgroup("v8", RA), 8, "A"),
        (setup_x, xgroup, 1, "x0"),
        (f"s_xor_b32 {sT1}, {sKH}, 1\ns_lshl_b32 {sT1}, {sT1}, 9", xgroup + srd(RB, PG, 1024) + f"buffer_load_dwordx4 v16, {R(RB)}, 0 offen lds\n", 1, "x1"),
        (setup_k, kvgroup(10, 3), 16, "K"),
        (setup_v, kvgroup(14, 1) + "s_mov_b32 s69, m0\n" + w2load * 2 + "s_mov_b32 m0, s69\n", 4, "VW"),
        ("", kvgroup(14, 1), 4, "V"),
    ]
    setup_wo = srd(RA, PWO, 4 << 20) + f"s_mov_b32 {s8R}, 8192\ns_mov_b32 {sU}, {L_WO}\n"
    wo_in, wo_out = f"s_mov_b32 s69, m0\ns_mov_b32 m0, {sU}\ns_mov_b32 {sOff}, {sWo}", f"s_mov_b32 {sU}, m0\ns_mov_b32 {sWo}, {sOff}\ns_mov_b32 m0, s69"
    if wo_tail == 4:
        segs += [(waitA, kvgroup(14, 1), 8, "V"), (setup_wo + wo_in, blkgroup("v9", RA), 4, "wo")]
    else:
        segs += [(waitA, kvgroup(14, 1), 4, "V"), (setup_wo + wo_in, blkgroup("v9", RA), 4 - wo_tail, "wo"),
                 (wo_out, kvgroup(14, 1), 4, "V"), (wo_in, blkgroup("v9", RA), wo_tail, "wo")]
    nops = lambda t: len(re.findall(r"buffer_(?:load|store)", t))
    gi, ops, pend = 0, 0, 0
    P, kdone, vdone = {}, [], []
    sched = dict(sched or {})
    Wc = W
    cuts = sorted(set([k, k + 1, chk_g + 1, cw_g + 1] + list(sched) + [x + 1 for x in gst]))
    def extra(t):
        nonlocal ops, pend
        e(t); ops += nops(t); pend += nops(t)
    extra(clears)
    for pre, body, n, name in segs:
        e(pre)
        nb = nops(body)
        while n > 0:
            m = min([n] + [c - gi for c in cuts if c > gi])
            t = body
            if gi >= k:
                if gi in sched:
                    pend += Wc - 4 * sched[gi]; Wc = 4 * sched[gi]
                if pend: e(f"v_add_u32 v3, {pend}, v3"); pend = 0
                t += f"s_waitcnt vmcnt({Wc})\nv_add_u32 v3, {nb}, v3\nds_write_b32 v1, v3 offset:{F_PROG}\n"
            else:
                pend += m * nb
            if m == 1:
                e(t)
            else:
                l = e.lab("LD")
                e(f"s_mov_b32 {sCnt}, {m}\n{l}:\n{t}s_sub_u32 {sCnt}, {sCnt}, 1\ns_cmp_lg_u32 {sCnt}, 0\ns_cbranch_scc1 {l}")
            for j in range(m):
                if name == "K": kdone.append(ops + 4)
                if name.startswith("V"): vdone.append(ops + 4)
                ops += nb
            gi += m; n -= m
            if gi - 1 in gst: stamp()
            if gi == k + 1:
                extra(arrive)
                if lst: stamp()
            if gi == chk_g + 1:
                extra(check); P["chk"] = ops
            if gi == cw_g + 1: extra(cwarm)
        P[name] = ops
        if lst: stamp()
    assert pend == 0 and 5 <= k <= 8 and chk_g > k and ops - vdone[-1] == 4*wo_tail and wo_tail >= 2
    P_V = lambda ksteps: vdone[2*ksteps - 1]
    for left in range(Wc - 4, 0, -4):
        if bar and left <= 4*wo_tail:
            if left in (4*wo_tail, 4): e(f"s_waitcnt vmcnt({left})\ns_barrier")
        else:
            e(f"s_waitcnt vmcnt({left})\nv_add_u32 v3, 4, v3\nds_write_b32 v1, v3 offset:{F_PROG}")
    e("s_waitcnt vmcnt(0)")
    stamp()
    e("s_barrier")
    e("s_branch L_stampout" if stamps and echo is None else "s_endpgm")

    nst[0] = 1
    e("L_compute:")
    if stamps: e("v_mov_b32 v255, 0\ns_mov_b32 s95, s3")
    if nocomp:
        e("s_waitcnt lgkmcnt(0)")
        if stamps: e("v_writelane_b32 v255, s98, 0")
        e("s_branch " + ("L_stampout" if stamps else "L_end"))
    vN, vG4 = "v3", "v4"
    vAo, vBo, vSo, vCo = "v5", "v6", "v7", "v8"
    sSlot, sMT, sNH, sH = "s53", "s54", "s55", "s56"
    sAo, sBo, sSo, sCo = "s57", "s58", "s59", "s60"
    sSig, sSpin, sEg, sQo, sFo, sFo2, sCS = "s61", "s62", "s63", "s64", "s65", "s66", "s67"
    sBi, sSi, sBi2, sPure, sCi, sOo, mOdd, sY, sTag, sTM = "s68", "s69", "s70", "s71", "s72", "s73", "s[74:75]", "s76", "s77", "s78"
    WS, ROUT = R(RWS), RB
    MA, MB, MC = 0x00ff00ff00ff00ff, 0x000f000f000f000f, 0x3333333333333333
    def setexec(m):
        e(f"s_mov_b32 exec_lo, {hex(m & 0xffffffff)}\ns_mov_b32 exec_hi, {hex(m >> 32)}")
    vXa, vWa, vAa, vKa, vVa, vQa, vPa, vHa, vGa = 16, 17, 19, 20, 24, 26, 27, 28, 31
    vYo, vGx, vGw, vQo, vFo = "v101", "v102", 103, "v105", "v106"
    vBi, vSi, vTag, vCi, vOo = "v197", "v198", "v199", "v13", "v14"
    assert WS_A == 0
    e(f"""s_lshr_b32 {sHH}, {sR}, 3
s_and_b32 {sC}, {sR}, 7
s_lshr_b32 {sB}, {sR}, 2
s_lshl_b32 {sSlot}, {sG}, 5
s_add_u32 {sSlot}, {sSlot}, {sR}
s_and_b32 {sMT}, {sW}, 1
s_lshr_b32 {sNH}, {sW}, 1
s_lshl2_add_u32 {sH}, {sG}, {sHH}
v_mov_b32 v12, 1
v_and_b32 {vN}, 15, v0
v_lshrrev_b32 {vG4}, 4, v0
v_lshlrev_b32 v9, 4, {vG4}
s_lshl_b32 {sAo}, {sSlot}, 5
s_add_u32 {sAo}, {sAo}, {sW}
s_lshl_b32 {sAo}, {sAo}, 6
v_lshl_add_u32 {vAo}, {vN}, 8, v9
v_and_b32 v11, 1, {vN}
v_bfe_u32 v10, {vN}, 1, 2
v_mul_u32_u24 v{vXa}, 1040, v10
v_lshl_add_u32 v{vXa}, v11, 9, v{vXa}
v_lshl_add_u32 v{vXa}, {vG4}, 3, v{vXa}
v_add_u32 v{vXa}, {L_X0}, v{vXa}
s_lshl_b32 {sCo}, {sMT}, 5
s_add_u32 {sCo}, {sCo}, {sC}
s_lshl1_add_u32 {sCo}, {sCo}, {sNH}
s_lshl_b32 {sCo}, {sCo}, 6
s_add_u32 {sCo}, {sCo}, {sH}
s_lshl_b32 {sCo}, {sCo}, 6
s_add_u32 {sCo}, {sCo}, {WS_C}
v_lshrrev_b32 v10, 2, {vN}
v_lshl_add_u32 {vCo}, v10, 16, v9
v_lshl_add_u32 {vCo}, v11, 11, {vCo}
v_cmp_eq_u32 {mOdd}, 1, v11
v_lshl_add_u32 v10, {vG4}, 2, v10
v_bfe_u32 v29, {vN}, 1, 1
v_lshlrev_b32 v11, 3, v11
v_and_b32 v30, 6, v10
v_xor_b32 v30, v30, v29
v_lshl_add_u32 v30, v30, 4, v11
v_lshl_add_u32 v30, v10, 7, v30
s_lshl_b32 {sT0}, {sW}, 5
v_xor_b32 v{vAa}, {sT0}, v30
v_add_u32 v{vAa}, {L_A}, v{vAa}
s_lshl_b32 {sT0}, {sNH}, 6
v_xor_b32 v{vWa}, {sT0}, v30
v_add_u32 v{vWa}, {L_WO}, v{vWa}
v_xor_b32 v{vWa+1}, 32, v{vWa}
v_and_b32 v30, 7, v10
v_lshlrev_b32 v30, 1, v30
v_xor_b32 v30, v30, v29
v_lshl_add_u32 v30, v30, 4, v11
v_lshl_add_u32 v30, v10, 8, v30
s_lshl_b32 {sT0}, {sW}, 6
v_xor_b32 v{vVa}, {sT0}, v30
v_add_u32 v{vVa}, {L_V}, v{vVa}
v_xor_b32 v{vVa+1}, 32, v{vVa}
v_xor_b32 v30, {vG4}, {vN}
v_lshlrev_b32 v30, 4, v30
v_lshl_add_u32 v30, {vN}, 8, v30
s_lshl_b32 {sT0}, {sW}, 12
v_add_u32 v{vKa}, {sT0}, v30
v_xor_b32 v{vKa+1}, 64, v{vKa}
v_xor_b32 v{vKa+2}, 0x80, v{vKa}
v_xor_b32 v{vKa+3}, 0xc0, v{vKa}
v_and_b32 v30, 3, {vN}
v_mul_u32_u24 v{vQa}, 272, v30
v_add3_u32 v{vQa}, v{vQa}, v9, v1
v_lshl_add_u32 v{vPa}, v30, 6, v9
v_add_u32 v{vPa}, v{vPa}, v1
v_lshlrev_b32 {vOo}, 3, v30
v_lshl_add_u32 {vOo}, {vG4}, 1, {vOo}
v_lshrrev_b32 v30, 2, {vN}
s_lshl_b32 {sT0}, {sMT}, 2
v_add_u32 v{vGa}, {sT0}, v30
v_mul_u32_u24 v{vHa}, 144, v{vGa}
v_lshl_add_u32 v{vHa}, {vG4}, 3, v{vHa}
v_add_u32 v{vHa}, v{vHa}, v1
v_lshl_add_u32 v{vGa}, v{vGa}, 2, v1
s_mul_i32 {sT0}, {sW}, 1040
s_add_u32 {sT0}, {sT0}, {L_X0}
v_lshlrev_b32 {vCi}, 4, v0
v_add_u32 {vGx}, {sT0}, {vCi}
v_and_b32 v{vGw}, 0x1ff, {vCi}
s_and_b32 {sT0}, {sR}, 1
s_lshl_b32 {sT0}, {sT0}, 9
v_add_u32 v{vGw}, {sT0}, v{vGw}
v_xor_b32 v{vGw+1}, 0x200, v{vGw}
v_add_u32 v{vGw}, {L_GW}, v{vGw}
v_add_u32 v{vGw+1}, {L_GW}, v{vGw+1}
v_and_b32 {vQo}, 31, v0
v_lshlrev_b32 {vYo}, 7, {vQo}
v_lshlrev_b32 {vQo}, 3, {vQo}
v_lshrrev_b32 {vFo}, 5, v0
v_lshl_add_u32 {vQo}, {vFo}, 12, {vQo}
v_lshlrev_b32 {vFo}, 3, v0
s_lshl4_add_u32 {sBo}, {sG}, {sW}
s_lshl_b32 {sBo}, {sBo}, 5
s_add_u32 {sBo}, {sBo}, {sR}
s_lshl_b32 {sBo}, {sBo}, 6
s_add_u32 {sBo}, {sBo}, {WS_B}
v_lshl_add_u32 {vBo}, {vN}, 13, v9
s_lshl_b32 {sSo}, {sG}, 7
s_add_u32 {sSo}, {sSo}, {sR}
s_lshl3_add_u32 {sSo}, {sSo}, {WS_S}
v_lshlrev_b32 {vSo}, 8, {vN}
s_lshl3_add_u32 {sBi}, {sH}, {sMT}
s_lshl_b32 {sBi}, {sBi}, 10
s_add_u32 {sBi}, {sBi}, {WS_B}
s_add_u32 {sBi2}, {sBi}, 4096
s_lshl1_add_u32 {sSi}, {sH}, {sMT}
s_lshl_b32 {sSi}, {sSi}, 7
s_add_u32 {sSi}, {sSi}, {WS_S}
v_lshl_add_u32 {vBi}, {vN}, 6, v9
v_lshlrev_b32 {vSi}, 3, {vN}
s_lshl3_add_u32 {sOo}, {sG}, {sC}
s_lshl2_add_u32 {sOo}, {sOo}, {sHH}
s_lshl_b32 {sCi}, {sOo}, 11
s_add_u32 {sCi}, {sCi}, {WS_C}
s_lshl_b32 {sOo}, {sOo}, 5
s_getreg_b32 {sSig}, hwreg(HW_REG_XCC_ID, 0, 3)
s_add_u32 {sSig}, {sSig}, 1
s_lshl_b32 {sEg}, {sG}, 12
s_add_u32 {sEg}, {sEg}, {WS_E}
s_mov_b32 {sSpin}, {spin}
s_mov_b32 {sCS}, {fbits(LOG2E * 128 ** -0.5)}
s_movk_i32 {sTM}, 0x3ff
s_waitcnt lgkmcnt(0)
s_lshl3_add_u32 {sQo}, {sG}, {sW}
s_lshl_b32 {sQo}, {sQo}, 5
s_add_u32 {sQo}, {sQo}, {sB}
s_lshl_b32 {sQo}, {sQo}, 8
s_lshl3_add_u32 {sFo}, {sG}, {sHH}
s_lshl4_add_u32 {sFo}, {sFo}, {sW}
s_lshl_b32 {sFo}, {sFo}, 9
s_add_u32 {sFo}, {sFo}, {WS_A + 32768}
s_add_u32 {sFo2}, {sFo}, 4096""")
    e(srd(RWS, PWS, WS_END) + srd(ROUT, POUT, 8192))
    if stamps: e("v_writelane_b32 v255, s98, 0")
    stamp()
    e("; ---- stage A")
    lds_wait(F_PROG, P["x0"])
    stamp()
    WF, XF, D = 32, 64, 96
    for t in range(8):
        trfrag(WF + 4*t, vAa, t*4096, 2048)
        e(f"ds_read2_b64 v[{XF+4*t}:{XF+4*t+3}], v{vXa} offset0:{t*8} offset1:{t*8+4}")
        if t >= 3:
            e("s_waitcnt lgkmcnt(9)"); mfma(D, WF + 4*(t-3), XF + 4*(t-3), t == 3)
    for t in range(5, 8):
        e(f"s_waitcnt lgkmcnt({3*(7-t)})"); mfma(D, WF + 4*t, XF + 4*t, False)
    setexec(MA); e(f"s_nop 5\nbuffer_store_dwordx4 v[{D}:{D+3}], {vAo}, {WS}, {sAo} offen {'' if fast else 'sc1'}\ns_mov_b64 exec, -1")
    stamp()
    lds_wait(F_PROG, P["x1"])
    e(f"""ds_read_b128 v[32:35], {vGx}
ds_read_b128 v[36:39], {vGx} offset:{L_X1 - L_X0}
ds_read_b128 v[40:43], v{vGw}
ds_read_b128 v[44:47], v{vGw+1}""")
    signal(F_A)
    e("s_waitcnt lgkmcnt(0)")
    for j in range(8):
        e(f"""v_lshlrev_b32 v54, 16, v{32+j}
v_and_b32 v55, 0xffff0000, v{32+j}
v_lshlrev_b32 v56, 16, v{40+j}
v_and_b32 v57, 0xffff0000, v{40+j}
v_mul_f32 v54, v54, v56
v_mul_f32 v55, v55, v57
v_cvt_pk_bf16_f32 v54, v54, v55
v_and_b32 v55, 0xffff0000, v54
v_lshlrev_b32 v54, 16, v54""")
        e("v_add_f32 v52, v54, v55" if j == 0 else "v_add_f32 v52, v52, v54\nv_add_f32 v52, v52, v55")
    for ctl in ("row_shr:1 bound_ctrl:0", "row_shr:2 bound_ctrl:0", "row_shr:4 bound_ctrl:0", "row_shr:8 bound_ctrl:0", "row_bcast:15 row_mask:0xa"):
        e(f"s_nop 1\nv_add_f32_dpp v52, v52, v52 {ctl}")
    e(f"""v_cvt_pk_bf16_f32 v52, v52, v52
v_lshlrev_b32 v52, 16, v52
v_mul_f32 v52, {fbits(-LOG2E)}, v52
v_exp_f32 v52, v52
s_lshl_b32 {sT0}, {sW}, 3
v_add_f32 v52, 1.0, v52
v_rcp_f32 v52, v52
v_lshrrev_b32 v30, 5, v0
v_cvt_pk_bf16_f32 v52, v52, v52
v_lshlrev_b32 v52, 16, v52
v_lshl_add_u32 v30, v30, 2, v1
v_add_u32 v30, {sT0}, v30
s_mov_b32 exec_lo, 0x80000000
s_mov_b32 exec_hi, 0x80000000
ds_write_b32 v30, v52 offset:{O_G}
s_mov_b64 exec, -1""")
    evalw = f"""v_sub_u32 v34, v33, v32
v_cmp_eq_u32 vcc, {sSig}, v34
v_add_u32 v34, -1, v34
s_cmp_eq_u32 vcc_lo, -1
s_cselect_b32 {sPure}, {1 if fast else 0}, 0
v_cmp_gt_u32 vcc, 8, v34
s_cmp_eq_u32 vcc_lo, -1"""
    e(f"""; ---- arrival of the group, from the loader's in-stream copy; stage-C words carry X + 1 of their consumer in the low ten mantissa bits
v_and_b32 v35, 31, v0
v_lshl_add_u32 v35, v35, 2, v1
s_lshl_b32 {sT0}, {sG}, 7
v_add_u32 v36, {sT0}, v35
s_lshl3_add_u32 {sT0}, {sMT}, {sNH}
s_lshl4_add_u32 {sT0}, {sT0}, {sC}
v_and_b32 v30, 1, v0
v_lshrrev_b32 v37, 2, {vN}
v_lshl_add_u32 v30, v37, 2, v30
v_lshl_add_u32 v30, v30, 3, {sT0}
v_lshl_add_u32 v30, v30, 2, v1""")
    lds_wait(F_PROG, P["chk"], f"ds_read_b32 v33, v35 offset:{O_Y}\nds_read_b32 v32, v36 offset:{O_X}\nds_read_b32 {vTag}, v30 offset:{O_X}")
    e(f"""v_readlane_b32 {sTag}, v32, {sR}
v_add_u32 {vTag}, 1, {vTag}
{evalw}
s_cbranch_scc0 L_chkslow
L_chkback:
s_add_u32 {sY}, {sTag}, {sSig}
s_add_u32 {sTag}, {sTag}, 1
s_and_b32 {sTag}, {sTag}, {sTM}
s_cmp_eq_u32 {sPure}, 0
s_cbranch_scc1 L_impure
L_pure:""")
    late = [f"""; the group was not complete when the loader looked
L_chkslow:
buffer_load_dword v33, {vYo}, {WS}, {sEg} offen sc1
s_waitcnt vmcnt(0)
{evalw}
s_cbranch_scc1 L_chkback
s_sleep {backoff}
s_sub_u32 {sSpin}, {sSpin}, 1
s_cbranch_scc0 L_chkslow
s_mov_b32 {sSpin}, 0
s_branch L_chkback
L_impure:
v_mov_b32 v36, v33
s_mov_b32 exec_lo, {hex(MA & 0xffffffff)}
s_mov_b32 exec_hi, {hex(MA >> 32)}
buffer_store_dwordx4 v[{D}:{D+3}], {vAo}, {WS}, {sAo} offen sc1
s_mov_b64 exec, -1
s_cmp_eq_u32 {sW}, 0
s_cbranch_scc0 L_imp1
v_mov_b32 v32, -1
v_mov_b32 v33, -1
v_mov_b32 v34, -1
v_mov_b32 v35, -1
s_lshl_b32 {sT0}, {sSlot}, 10
s_add_u32 {sT0}, {sT0}, {WS_B}
buffer_store_dwordx4 v[32:35], {vCi}, {WS}, {sT0} offen sc1
s_lshl_b32 {sT0}, {sSlot}, 5
s_add_u32 {sT0}, {sT0}, {WS_S}
s_mov_b64 exec, 3
buffer_store_dwordx4 v[32:35], {vCi}, {WS}, {sT0} offen sc1
s_mov_b64 exec, -1
L_imp1:
s_waitcnt vmcnt(0)
s_mov_b64 exec, 1
ds_add_rtn_u32 v2, v1, v12 offset:{F_GO}
s_waitcnt lgkmcnt(0)
v_readfirstlane_b32 {sT0}, v2
s_cmp_eq_u32 {sT0}, 3
s_cbranch_scc0 L_imp2
s_lshl_b32 {sT0}, {sSlot}, 7
s_add_u32 {sT0}, {sT0}, {WS_E}
v_mov_b32 v32, {sY}
v_mov_b32 v33, 0
buffer_store_dword v32, v33, {WS}, {sT0} offen offset:4 sc1
L_imp2:
s_mov_b64 exec, -1
L_imp3:
buffer_load_dword v33, {vYo}, {WS}, {sEg} offen offset:4 sc1
s_waitcnt vmcnt(0)
v_cmp_eq_u32 vcc, v36, v33
s_cmp_eq_u32 vcc_lo, -1
s_cbranch_scc1 L_pure
s_sleep {backoff}
s_sub_u32 {sSpin}, {sSpin}, 1
s_cbranch_scc0 L_imp3
s_mov_b32 {sSpin}, 0
s_branch L_pure"""]
    stamp()
    def store2(ins):
        a, b = e.lab("S"), e.lab("S")
        e(f"s_cmp_eq_u32 {sPure}, 0\ns_cbranch_scc1 {a}\n{ins}\n{b}:")
        late.append(f"{a}:\n{ins} sc1\ns_branch {b}")
    def retry(loop, done):
        e(f"s_cbranch_vccz {done}\ns_mov_b64 exec, vcc\ns_sub_u32 {sSpin}, {sSpin}, 1\ns_cbranch_scc0 {loop}\ns_mov_b32 {sSpin}, 0\n{done}:\ns_mov_b64 exec, -1")
    e(f"""; ---- gather q and the FFN sums
L_gA:
buffer_load_dwordx2 v[32:33], {vQo}, {WS}, {sQo} offen sc1
buffer_load_dwordx2 v[34:35], {vQo}, {WS}, {sQo} offen offset:2048 sc1
buffer_load_dwordx2 v[36:37], {vFo}, {WS}, {sFo} offen sc1
buffer_load_dwordx2 v[38:39], {vFo}, {WS}, {sFo} offen offset:2048 sc1
buffer_load_dwordx2 v[40:41], {vFo}, {WS}, {sFo2} offen sc1
buffer_load_dwordx2 v[42:43], {vFo}, {WS}, {sFo2} offen offset:2048 sc1
s_waitcnt vmcnt(0)
v_max3_u32 v44, v32, v33, v34
v_max3_u32 v45, v35, v36, v37
v_max3_u32 v46, v38, v39, v40
v_max3_u32 v47, v41, v42, v43
v_max3_u32 v44, v44, v45, v46
v_max_u32 v44, v44, v47
v_cmp_eq_u32 vcc, -1, v44""")
    retry("L_gA", "L_gAdone")
    stamp()
    e(f"""v_add_f32 v32, v32, v34
v_add_f32 v33, v33, v35
v_cvt_pk_bf16_f32 v32, v32, v33
s_mul_i32 {sT0}, {sW}, 272
v_lshl_add_u32 v30, v0, 2, v1
v_add_u32 v30, {sT0}, v30
ds_write_b32 v30, v32 offset:{O_Q}""")
    signal(F_Q)
    e(f"""; h = silu(gate) * up
v_add_f32 v36, v36, v38
v_add_f32 v37, v37, v39
v_add_f32 v40, v40, v42
v_add_f32 v41, v41, v43
v_cvt_pk_bf16_f32 v36, v36, v37
v_cvt_pk_bf16_f32 v40, v40, v41
v_and_b32 v37, 0xffff0000, v36
v_lshlrev_b32 v36, 16, v36
v_and_b32 v41, 0xffff0000, v40
v_lshlrev_b32 v40, 16, v40
v_mul_f32 v38, {fbits(-LOG2E)}, v36
v_mul_f32 v39, {fbits(-LOG2E)}, v37
v_exp_f32 v38, v38
v_exp_f32 v39, v39
s_nop 0
v_add_f32 v38, 1.0, v38
v_add_f32 v39, 1.0, v39
v_rcp_f32 v38, v38
v_rcp_f32 v39, v39
s_nop 0
v_mul_f32 v36, v36, v38
v_mul_f32 v37, v37, v39
v_cvt_pk_bf16_f32 v36, v36, v37
v_and_b32 v37, 0xffff0000, v36
v_lshlrev_b32 v36, 16, v36
v_mul_f32 v36, v36, v40
v_mul_f32 v37, v37, v41
v_cvt_pk_bf16_f32 v36, v36, v37
v_lshrrev_b32 v29, 5, v0
s_lshl_b32 {sT0}, {sW}, 1
v_add_u32 v29, {sT0}, v29
v_mul_u32_u24 v29, 144, v29
v_and_b32 v30, 31, v0
v_lshl_add_u32 v29, v30, 2, v29
v_add_u32 v29, v29, v1
ds_write_b32 v29, v36 offset:{O_H}
v_and_b32 v30, 3, v0
v_lshl_add_u32 v30, v30, 2, v1
s_lshl_b32 {sT0}, {sNH}, 5
s_add_u32 {sT0}, {sT0}, {sMT}
s_lshl_b32 {sT0}, {sT0}, 3
v_add_u32 v29, {sT0}, v{vPa}""")
    KF, QF, S = 32, 96, 112
    def kreads(j):
        return "\n".join(f"ds_read_b128 v[{KF+16*j+4*t}:{KF+16*j+4*t+3}], v{vKa+t} offset:{j*16384}" for t in range(4))
    lds_wait(F_PROG, kdone[7])
    e(kreads(0) + "\n" + kreads(1))
    lds_wait(F_Q, 4)
    for t in range(4):
        e(f"ds_read_b128 v[{QF+4*t}:{QF+4*t+3}], v{vQa} offset:{O_Q + t*64}")
    for t in range(4):
        e(f"s_waitcnt lgkmcnt({3-t})")
        for j in range(2): mfma(S + 4*j, KF + 16*j + 4*t, QF + 4*t, t == 0)
    for j in (2, 3):
        lds_wait(F_PROG, kdone[4*j + 3], kreads(j))
        if j == 3: stamp()
        for t in range(4): mfma(S + 4*j, KF + 16*j + 4*t, QF + 4*t, t == 0)
    e(f"v_max3_f32 v32, v{S}, v{S+1}, v{S+2}\nv_max3_f32 v33, v{S+3}, v{S+4}, v{S+5}\nv_max3_f32 v32, v32, v{S+6}, v{S+7}")
    e(f"v_max3_f32 v33, v33, v{S+8}, v{S+9}\nv_max3_f32 v32, v32, v{S+10}, v{S+11}\nv_max_f32 v32, v32, v33")
    setexec(MB)
    e(f"v_max3_f32 v32, v32, v{S+12}, v{S+13}\nv_max3_f32 v32, v32, v{S+14}, v{S+15}")
    e(f"ds_max_f32 v30, v32 offset:{O_MAX}"); signal(F_MX)
    lds_wait(F_MX, 4, f"ds_read_b32 v32, v30 offset:{O_MAX}")
    vMC = 128
    e(f"v_mul_f32 v{vMC}, {sCS}, v32")
    for i in range(16): e(f"v_fma_f32 v{S+i}, v{S+i}, {sCS}, -v{vMC}")
    for i in range(16): e(f"v_exp_f32 v{S+i}, v{S+i}")
    setexec(MB)
    for i in range(8): e(f"v_cvt_pk_bf16_f32 v{32+i}, v{S+2*i}, v{S+2*i+1}")
    for j in range(4): e(f"ds_write_b64 v29, v[{32+2*j}:{33+2*j}] offset:{O_P + j*512}")
    signal(F_P)
    stamp()
    PF = 96
    e("; ---- P fragments, row sums (first wave), stats record\nv_mov_b32 v32, 0x3f803f80\nv_mov_b32 v33, 0x3f803f80\nv_mov_b32 v34, 0x3f803f80\nv_mov_b32 v35, 0x3f803f80")
    lds_wait(F_P, 4)
    for kk in range(8): e(f"ds_read_b128 v[{PF+4*kk}:{PF+4*kk+3}], v{vPa} offset:{O_P + kk*256}")
    e(f"s_cmp_eq_u32 {sW}, 0\ns_cbranch_scc0 L_nostat\ns_waitcnt lgkmcnt(0)")
    for kk in range(8): mfma(36, 32, PF + 4*kk, kk == 0)
    e(f"s_nop 7\nv_mov_b32 v{vMC+1}, v36\ns_mov_b64 exec, 0xf")
    store2(f"buffer_store_dwordx2 v[{vMC}:{vMC+1}], {vSo}, {WS}, {sSo} offen"); e("s_mov_b64 exec, -1\nL_nostat:")
    WOF, W2F, HF, D2, vGt = 132, 164, 180, 188, 196
    lds_wait(F_PROG, P["VW"])
    stamp()
    for j in range(2):
        for t in range(2): trfrag(W2F + 8*j + 4*t, vWa + j, L_W2 - L_WO + t*4096, 2048)
    for t in range(2):
        e(f"ds_read2_b64 v[{HF+4*t}:{HF+4*t+3}], v{vHa} offset0:{O_H//8 + t*8} offset1:{O_H//8 + t*8 + 4}")
    e(f"ds_read_b32 v{vGt}, v{vGa} offset:{O_G}\ns_waitcnt lgkmcnt(0)")
    for t in range(2):
        for j in range(2): mfma(D2 + 4*j, W2F + 8*j + 4*t, HF + 4*t, t == 0)
    e(f"""v_sub_f32 v32, 1.0, v{vGt}
v_cvt_pk_bf16_f32 v32, v32, v32
v_lshlrev_b32 v32, 16, v32
v_and_b32 v33, 2, v0
v_cmp_eq_u32 vcc, 0, v33
s_nop 2""")
    for i in range(4): e(f"v_cndmask_b32 v{D2+i}, v{D2+i}, v{D2+4+i}, {mOdd}")
    for i in range(4): e(f"v_mul_f32 v{D2+i}, v{D2+i}, v32")
    for i in range(4): e(f"v_cndmask_b32 v{D2+i}, 0, v{D2+i}, vcc")
    VF, O = 32, 200
    for k0, k1 in ((0, 3), (3, 5), (5, 7), (7, 8)):
        if k1 == 8 and bar: e("s_barrier")
        else: lds_wait(F_PROG, P_V(k1))
        if k1 == 8: stamp()
        for kq in range(k0, k1):
            for m in range(2): trfrag(VF + 8*(kq - k0) + 4*m, vVa + m, kq*8192, 4096)
        for kq in range(k0, k1):
            for m in range(2):
                e(f"s_waitcnt lgkmcnt({(k1 - 1 - kq)*4 + (2 if m == 0 else 0)})")
                mfma(O + 4*m, VF + 8*(kq - k0) + 4*m, PF + 4*kq, kq == 0)
    setexec(MB)
    e("s_nop 4")
    for i in range(4): e(f"v_cvt_pk_bf16_f32 v{32+i}, v{O+2*i}, v{O+2*i+1}")
    store2(f"buffer_store_dwordx4 v[32:35], {vBo}, {WS}, {sBo} offen"); e("s_mov_b64 exec, -1")
    stamp()
    BF, ST, DD = 40, 56, 64
    gB = f"""buffer_load_dwordx2 v[{ST}:{ST+1}], {vSi}, {WS}, {sSi} offen sc1
buffer_load_dwordx4 v[{BF}:{BF+3}], {vBi}, {WS}, {sBi} offen sc1
buffer_load_dwordx4 v[{BF+4}:{BF+7}], {vBi}, {WS}, {sBi} offen offset:2048 sc1
buffer_load_dwordx4 v[{BF+8}:{BF+11}], {vBi}, {WS}, {sBi2} offen sc1
buffer_load_dwordx4 v[{BF+12}:{BF+15}], {vBi}, {WS}, {sBi2} offen offset:2048 sc1"""
    e("; ---- stage B: the wo block is still in flight; the first gather round returns with it\n" + gB)
    if bar: e("s_barrier")
    else: lds_wait(F_PROG, ops - 4)
    for t in range(4):
        if t == 3: e("s_waitcnt lgkmcnt(8)\ns_barrier")
        for j in range(2): trfrag(WOF + 16*j + 4*t, vWa + j, t*4096, 2048)
    def btest(b, st):
        e(f"v_max3_u32 v58, v{b}, v{b+1}, v{b+2}\nv_max3_u32 v59, v{b+3}, v{b+4}, v{b+5}\nv_max3_u32 v60, v{b+6}, v{b+7}, v{b+8}")
        e(f"v_max3_u32 v58, v58, v{b+9}, v{b+10}\nv_max3_u32 v59, v59, v{b+11}, v{b+12}\nv_max3_u32 v60, v60, v{b+13}, v{b+14}")
        e(f"v_max3_u32 v58, v58, v{b+15}, v{st}\nv_max3_u32 v59, v59, v60, v{st+1}\nv_max_u32 v58, v58, v59\nv_cmp_eq_u32 vcc, -1, v58")
    e(f"s_branch L_gB1\nL_gB:\n{gB}\nL_gB1:\ns_waitcnt vmcnt(0)")
    btest(BF, ST)
    retry("L_gB", "L_gBdone")
    stamp()
    e("s_waitcnt lgkmcnt(0)")
    for t in range(4):
        for j in range(2): mfma(DD + 4*j, WOF + 16*j + 4*t, BF + 4*t, t == 0)
    X1, X2 = "quad_perm:[1,0,3,2] row_mask:0xf bank_mask:0xf", "quad_perm:[2,3,0,1] row_mask:0xf bank_mask:0xf"
    e(f"""; weight of split s: g * 2^(m_s - M) / sum_s 2^(m_s - M) l_s (v58), the neighbour's in v59
v_max_f32_dpp v58, v{ST}, v{ST} {X1}
s_nop 1
v_max_f32_dpp v58, v58, v58 {X2}
v_sub_f32 v58, v{ST}, v58
v_exp_f32 v58, v58
s_nop 0
v_mul_f32 v59, v58, v{ST+1}
v_mul_f32 v58, v58, v{vGt}
s_nop 0
v_add_f32_dpp v59, v59, v59 {X1}
s_nop 1
v_add_f32_dpp v59, v59, v59 {X2}
v_rcp_f32 v59, v59""")
    for i in range(4): e(f"v_cndmask_b32 v{72+i}, v{DD+4+i}, v{DD+i}, {mOdd}")
    e("v_mul_f32 v58, v58, v59")
    for i in range(4): e(f"v_cndmask_b32 v{DD+i}, v{DD+i}, v{DD+4+i}, {mOdd}")
    e(f"v_mov_b32_dpp v59, v58 {X1}")
    for i in range(4): e(f"v_fma_f32 v{DD+i}, v{DD+i}, v58, v{D2+i}")
    for i in range(4): e(f"v_fmac_f32_dpp v{DD+i}, v{72+i}, v59 {X1}")
    for i in range(4): e(f"v_add_f32_dpp v{DD+4+i}, v{DD+i}, v{DD+i} {X2}")
    setexec(MC)
    for i in range(4): e(f"v_bfi_b32 v{DD+4+i}, {sTM}, {vTag}, v{DD+4+i}")
    e(f"buffer_store_dwordx4 v[{DD+4}:{DD+7}], {vCo}, {WS}, {sCo} offen sc1\ns_mov_b64 exec, -1")
    stamp()
    e(f"s_cmp_eq_u32 {sW}, 0")
    e("s_cbranch_scc0 " + ("L_stampout" if stamps and echo is None else "L_end"))
    e(f"""; ---- stage C (first compute wave); a round issued before the own store is through would come back too early
s_waitcnt vmcnt(0)
L_gC:
buffer_load_dwordx4 v[32:35], {vCi}, {WS}, {sCi} offen sc1
buffer_load_dwordx4 v[36:39], {vCi}, {WS}, {sCi} offen offset:1024 sc1
s_waitcnt vmcnt(0)
; a matching tag leaves zero bits behind""")
    for i in range(8): e(f"v_xor_b32 v{32+i}, {sTag}, v{32+i}")
    e(f"v_or3_b32 v40, v32, v33, v34\nv_or3_b32 v41, v35, v36, v37\nv_or3_b32 v40, v40, v38, v39\nv_bitop3_b32 v40, v40, v41, {sTM} bitop3:0xa8\nv_cmp_ne_u32 vcc, 0, v40")
    retry("L_gC", "L_gCdone")
    stamp()
    for i in range(4): e(f"v_add_f32 v{32+i}, v{32+i}, v{36+i}")
    e(f"""; rows 0..3 <- registers 0..3 (transposing reduction), then the four quads of each row
s_nop 0
v_permlane32_swap_b32 v32, v34
v_permlane32_swap_b32 v33, v35
s_nop 0
v_add_f32 v32, v32, v34
v_add_f32 v33, v33, v35
s_lshl2_add_u32 {sEg}, {sSlot}, {WS_X}
v_mov_b32 v41, {sY}
v_permlane16_swap_b32 v32, v33
v_mov_b32 v42, 0
v_add_f32 v32, v32, v33
s_nop 1
v_add_f32_dpp v32, v32, v32 row_ror:4 row_mask:0xf bank_mask:0xf
s_nop 1
v_add_f32_dpp v32, v32, v32 row_ror:8 row_mask:0xf bank_mask:0xf""")
    setexec(MB)
    e(f"""v_cvt_pk_bf16_f32 v32, v32, v32
buffer_store_short v32, {vOo}, {R(ROUT)}, {sOo} offen
s_mov_b64 exec, 1
buffer_store_dword v41, v42, {WS}, {sEg} offen""")
    if stamps:
        e("s_mov_b64 exec, -1\ns_waitcnt vmcnt(0)")
        stamp()
        if echo is not None:
            wg, i0, i1, mult = echo
            e(f"""s_cmp_eq_u32 s2, {wg}
s_cbranch_scc0 L_end
v_readlane_b32 s70, v255, {i0}
v_readlane_b32 s71, v255, {i1}
s_nop 3
s_sub_u32 s70, s71, s70
s_mul_i32 s70, s70, {mult}
L_echo:
s_memrealtime s[72:73]
s_waitcnt lgkmcnt(0)
s_sub_u32 s72, s72, s96
s_cmp_lt_u32 s72, s70
s_cbranch_scc1 L_echo""")
        else:
            e("L_stampout:")
            e(f"s_load_dwordx2 s[4:5], s[0:1], 96\ns_mov_b32 s6, {256<<20}\ns_mov_b32 s7, 0x20000\nv_lshlrev_b32 v2, 2, v0")
            e(f"s_mul_i32 s8, s2, 5\ns_add_u32 s8, s8, s95\ns_lshl_b32 s8, s8, 8\ns_add_u32 s8, s8, {STAMP_OFF}\ns_waitcnt lgkmcnt(0)")
            e(f"buffer_store_dword v255, v2, s[4:7], s8 offen")
    e("s_endpgm")
    for t in late: e(t)
    e("L_end:\ns_endpgm")
    nv = 256 if stamps else 208
    head = HEADER.strip("\n").split("\n") + [f"; @launch grid=(256,1,1) block=(320,1,1) lds={LDS_BYTES}",
            '.amdgcn_target "amdgcn-amd-amdhsa--gfx950"', ".text", f".globl {NAME}_kernel", ".p2align 8",
            f".type {NAME}_kernel,@function", f"{NAME}_kernel:"]
    foot = ['.section .rodata,"a"', ".p2align 6", f".amdhsa_kernel {NAME}_kernel",
            f"  .amdhsa_next_free_vgpr {nv}", "  .amdhsa_next_free_sgpr 102", f"  .amdhsa_accum_offset {nv}",
            "  .amdhsa_group_segment_fixed_size 0", "  .amdhsa_kernarg_size 104", "  .amdhsa_user_sgpr_count 2",
            "  .amdhsa_user_sgpr_kernarg_segment_ptr 1", "  .amdhsa_system_sgpr_workgroup_id_x 1",
            "  .amdhsa_float_denorm_mode_32 3", ".end_amdhsa_kernel"]
    return "\n".join(head + e.L + foot) + "\n"

if __name__ == "__main__":
    out = sys.argv[1] if len(sys.argv) > 1 else f"cdna_kernels/{NAME}.s"
    open(out, "w").write(gen())
```

```python
import sys, struct, re
NAME = "gated_mix__sliding_block_cached__glu_gated_swiglu__decode"
STAMP_OFF = 128 << 20
NWAVES = 5

L_K = 0
L_V = 65536
L_A = 98304
L_WO = 131072
L_X0 = L_WO
L_X1 = L_X0 + 4 * 1040
L_GW = L_X1 + 4 * 1040
L_W2 = 147456
L_M = 155648
F_PROG, F_GO, F_A, F_Q, F_MX, F_P = 0, 4, 8, 12, 16, 20
O_MAX = 32
O_G = 64
O_Q = 128
O_H = 1280
O_P = 2560
O_X = 4608
O_Y = 5632
O_JUNK = 6144
LDS_BYTES = 163840
WS_A = 0
WS_B = 512 << 10
WS_S = 768 << 10
WS_X = 792 << 10
WS_E = 800 << 10
WS_C = 1 << 20
WS_END = WS_C + (512 << 10)
LOG2E = 1.4426950408889634
FF_BYTES = 512 * 1792 * 2

HEADER = """
"""

def fbits(x):
    return "0x%08x" % struct.unpack("<I", struct.pack("<f", x))[0]

class G:
    def __init__(self):
        self.L = []
        self.nlab = 0
    def __call__(self, s):
        for line in s.split("\n"):
            line = line.strip()
            if line:
                self.L.append(line if line.endswith(":") or line.startswith(";") else "    " + line)
    def lab(self, p="L"):
        self.nlab += 1
        return f"{p}_{self.nlab}"

def gen(k=6, stamps=False, only=None, spin=2000000, echo=None, fast=True, nocomp=False, lst=False, gst=(), chk_g=13, cw_g=28, backoff=8, bar=True, prio=0, wo_tail=4, sched=None, soft=4, noc=False, cj=0, xb=None):
    if echo is not None: stamps = True
    W = 4 * k
    WS_END = WS_C + ((512 << 10) << cj)
    e = G()
    PX, PK, PV, PWQ, PWO, PW1, PW3, PW2, PG, POUT, PWS = 4, 6, 8, 10, 12, 16, 18, 20, 22, 24, 28
    RA, RB, RWS = 32, 36, 40
    def R(b): return f"s[{b}:{b+3}]"
    sW, sG, sR, sHH, sC, sB = "s3", "s44", "s45", "s46", "s47", "s48"
    sT0, sT1, sT2, sT3 = "s49", "s50", "s51", "s52"
    nst = [0]
    def stamp():
        if stamps:
            i = nst[0]; nst[0] += 1
            if only is None or i in only: e(f"s_memrealtime s[96:97]\ns_waitcnt lgkmcnt(0)\nv_writelane_b32 v255, s96, {i}")
    def srd(d, p, n):
        return f"s_mov_b64 s[{d}:{d+1}], s[{p}:{p+1}]\ns_mov_b32 s{d+2}, {n}\ns_mov_b32 s{d+3}, 0x20000\n"
    def lds_wait(off, n, also=""):
        l = e.lab("W")
        e(f"{l}:\nds_read_b32 v2, v1 offset:{off}\n{also}\ns_waitcnt lgkmcnt(0)\nv_readfirstlane_b32 {sT0}, v2\ns_cmp_ge_i32 {sT0}, {n}\ns_cbranch_scc0 {l}")
    def signal(off):
        e(f"s_mov_b64 exec, 1\nds_add_u32 v1, v12 offset:{off}\ns_mov_b64 exec, -1")
    def mfma(d, a, b, first):
        e(f"v_mfma_f32_16x16x32_bf16 v[{d}:{d+3}], v[{a}:{a+3}], v[{b}:{b+3}], " + ("0" if first else f"v[{d}:{d+3}]"))
    def trfrag(r, v, off, half):
        e(f"ds_read_b64_tr_b16 v[{r}:{r+1}], v{v} offset:{off}\nds_read_b64_tr_b16 v[{r+2}:{r+3}], v{v} offset:{off + half}")

    if stamps: e("s_memrealtime s[98:99]")
    e(f"""s_load_dwordx16 s[4:19], s[0:1], 0
s_load_dwordx8 s[20:27], s[0:1], 64
s_load_dwordx2 s[28:29], s[0:1], 96
v_lshrrev_b32 v2, 6, v0
s_cmp_ge_u32 s2, 256
v_readfirstlane_b32 {sW}, v2
s_cbranch_scc1 L_end
v_mov_b32 v1, {L_M}
v_and_b32 v0, 63, v0
s_and_b32 {sG}, s2, 7
s_lshr_b32 {sR}, s2, 3
s_sub_u32 {sW}, {sW}, 1
s_cbranch_scc1 L_loader
s_getpc_b64 s[64:65]
L_pc:
s_lshl2_add_u32 {sT0}, {sR}, {sW}
s_lshl_b32 {sT0}, {sT0}, 6
s_min_u32 {sT0}, {sT0}, L_end - L_pc
s_load_dword s66, s[64:65], {sT0}
s_barrier
s_branch L_compute""")

    sStr, sOff, sKV, sWo, sW2, s8R, sCnt, sKH, sRot, sU = "s53", "s54", "s55", "s56", "s57", "s58", "s59", "s60", "s67", "s68"
    e(f"""L_loader:
s_and_b32 {sT0}, {sR}, 28
s_lshl_b32 {sT0}, {sT0}, 1
s_add_u32 {sT0}, {sT0}, {sG}
s_sub_u32 {sT0}, {sT0}, 32
s_cmp_lt_u32 {sT0}, 28
s_cselect_b32 s{RA+2}, {FF_BYTES}, 0
s_lshr_b32 {sT1}, {sR}, 1
s_lshl3_add_u32 {sT1}, {sG}, {sT1}
s_movk_i32 {sStr}, 3584
s_cmp_lt_u32 {sR}, 16
s_cselect_b32 s{RA+2}, {4<<20}, s{RA+2}
s_cselect_b32 {sOff}, {sT1}, {sT0}
s_cselect_b32 {sStr}, 8192, {sStr}
s_and_b32 {sKH}, {sR}, 1
s_mul_i32 {sT0}, {sStr}, {sKH}
s_lshl1_add_u32 {sOff}, {sT0}, {sOff}
s_lshl_b32 {sOff}, {sOff}, 7
s_lshl_b32 {s8R}, {sStr}, 3
s_mov_b32 s{RA+3}, 0x20000
s_mov_b32 m0, {L_A}
v_lshrrev_b32 v5, 3, v0
v_and_b32 v6, 6, v5
v_and_b32 v7, 7, v0
v_xor_b32 v6, v6, v7
v_lshlrev_b32 v6, 4, v6
v_mad_u32_u24 v8, v5, {sStr}, v6
v_lshl_add_u32 v3, v0, 2, v1
v_mov_b32 v4, 0xff800000
v_cmp_gt_u32 vcc, 8, v0
s_mov_b64 exec, 0xfff
s_lshl_b32 s61, {sG}, 5
v_cndmask_b32 v4, v4, 0, vcc
ds_write_b32 v3, v4
s_mov_b64 exec, -1
s_add_u32 s61, s61, {sR}
s_lshl_b32 s70, s61, 7
s_add_u32 s70, s70, {WS_E}
s_lshl2_add_u32 s71, s61, {WS_X}
s_mov_b32 s{RWS+2}, {WS_END}
s_mov_b32 s{RWS+3}, 0x20000
s_lshl_b32 s62, s61, 11
s_lshl_b32 s63, s61, 10
s_add_u32 s63, s63, {WS_B}
s_lshl_b32 s61, s61, 5
s_add_u32 s61, s61, {WS_S}
s_and_b32 {sC}, {sR}, 7
s_lshr_b32 {sHH}, {sR}, 3
v_lshlrev_b32 v16, 4, v0
v_mov_b32 v20, -1
v_mov_b32 v21, -1
v_mov_b32 v22, -1
v_mov_b32 v23, -1
v_mov_b32 v3, {-W}""")
    if stamps: e("v_mov_b32 v255, 0\ns_mov_b32 s95, 4")
    e(f"""{f"s_setprio {prio}" if prio else ""}
s_bitcmp1_b32 {sR}, 1
s_waitcnt lgkmcnt(0)
s_barrier
s_cselect_b64 s[{RA}:{RA+1}], s[{PW3}:{PW3+1}], s[{PW1}:{PW1+1}]
s_cmp_lt_u32 {sR}, 16
s_cselect_b64 s[{RA}:{RA+1}], s[{PWQ}:{PWQ+1}], s[{RA}:{RA+1}]""")
    if stamps:
        e("v_writelane_b32 v255, s98, 0"); nst[0] = 1
        if lst: stamp()
    clears = f"""; sentinel words (plain stores, they stay in this XCD's L2): own A record, slice r of the group's B area and of its stats
s_load_dword s65, s[{PWS}:{PWS+1}], s71
s_mov_b64 s[{RWS}:{RWS+1}], s[{PWS}:{PWS+1}]
buffer_store_dwordx4 v[20:23], v16, {R(RWS)}, s62 offen
buffer_store_dwordx4 v[20:23], v16, {R(RWS)}, s62 offen offset:1024
buffer_store_dwordx4 v[20:23], v16, {R(RWS)}, s63 offen
s_mov_b64 exec, 3
buffer_store_dwordx4 v[20:23], v16, {R(RWS)}, s61 offen
s_mov_b64 exec, -1
"""
    arrive = f"""; arrival: Y = X + 1 + xcc once the sentinels are in place, X being whatever the word held at entry (the end of the launch sets X = Y).
s_getreg_b32 s66, hwreg(HW_REG_XCC_ID, 0, 3)
s_waitcnt lgkmcnt(0)
v_mov_b32 v25, s65
s_add_u32 s65, s65, s66
s_add_u32 s65, s65, 1
v_mov_b32 v24, s65
v_mov_b32 v26, v25
v_mov_b32 v27, v25
s_mov_b64 exec, 0xff
buffer_store_dwordx4 v[24:27], v16, {R(RWS)}, s70 offen
s_mov_b64 exec, -1
"""
    check = f"""; copy of all X words and of the group's Y words for the compute waves
s_mov_b32 s71, {WS_X}
s_mov_b32 s69, m0
s_mov_b32 m0, {L_M + O_X}
v_lshlrev_b32 v17, 7, v0
buffer_load_dwordx4 v16, {R(RWS)}, s71 offen lds
s_mov_b32 m0, {L_M + O_Y}
s_lshl_b32 s71, {sG}, 12
s_add_u32 s71, s71, {WS_E}
s_mov_b32 exec_hi, 0
buffer_load_dword v17, {R(RWS)}, s71 offen sc1 lds
s_mov_b64 exec, -1
s_mov_b32 m0, s69
"""
    cwarm = f"""; read the own C in-box once (into unused LDS) so that its lines are in the memory-side cache when the partial sums arrive
s_lshl2_add_u32 s71, {sC}, {sHH}
s_lshl_b32 {sT0}, {sG}, 5
s_add_u32 s71, s71, {sT0}
s_lshl_b32 s71, s71, {11 + cj}
s_add_u32 s71, s71, {WS_C}
s_mov_b32 s69, m0
s_mov_b32 m0, {L_M + O_JUNK}
s_nop 0
buffer_load_dwordx4 v16, {R(RWS)}, s71 offen lds
buffer_load_dwordx4 v16, {R(RWS)}, s71 offen offset:1024 lds
s_mov_b32 m0, s69
"""
    setup_x = srd(RB, PX, 8192) + f"""v_lshrrev_b32 v4, 5, v0
v_and_b32 v7, 31, v0
v_lshlrev_b32 v7, 4, v7
v_lshl_add_u32 v4, v4, 10, v7
v_lshl_add_u32 v9, v5, 10, v6
s_lshl_b32 {sT1}, {sKH}, 9
s_mov_b32 m0, {L_X0}
s_nop 0"""
    setup_k = srd(RB, PK, 64 << 20) + f"""s_lshr_b32 {sKV}, {sR}, 2
s_lshl3_add_u32 {sKV}, {sKV}, {sG}
s_lshl_b32 {sKV}, {sKV}, 4
s_and_b32 {sT0}, {sR}, 3
s_add_u32 {sKV}, {sKV}, {sT0}
s_add_u32 {sKV}, {sKV}, 12
s_lshl_b32 {sKV}, {sKV}, 16
; 256-byte rows, 4 per instruction: slot (row, pos) holds chunk pos ^ (row & 15) for K, pos ^ 2*(row & 7) for V
v_lshrrev_b32 v5, 4, v0
v_and_b32 v7, 15, v0
v_xor_b32 v6, v7, v5
v_lshlrev_b32 v6, 4, v6
v_lshl_add_u32 v10, v5, 8, v6
v_xor_b32 v11, 64, v10
v_xor_b32 v12, 0x80, v10
v_xor_b32 v13, 0xc0, v10
v_lshlrev_b32 v6, 1, v5
v_xor_b32 v6, v7, v6
v_lshlrev_b32 v6, 4, v6
v_lshl_add_u32 v14, v5, 8, v6
v_xor_b32 v15, 0x80, v14
s_lshl_b32 {sRot}, {sR}, 12
s_mov_b32 m0, {L_K}"""
    setup_v = f"""s_mov_b64 s[{RB}:{RB+1}], s[{PV}:{PV+1}]
s_mov_b32 m0, {L_V}
s_lshl_b32 {sT0}, {sC}, 7
s_lshl2_add_u32 {sWo}, {sG}, {sHH}
s_lshl_b32 {sWo}, {sWo}, 17
s_add_u32 {sWo}, {sWo}, {sT0}
s_lshl3_add_u32 {sT3}, {sHH}, {sG}
s_lshl_b32 {sW2}, {sT3}, 16
s_add_u32 {sW2}, {sW2}, {sT0}
s_mov_b64 s[{RA}:{RA+1}], s[{PW2}:{PW2+1}]
s_cmp_lt_u32 {sT3}, 28
s_cselect_b32 s{RA+2}, {FF_BYTES}, 0
s_mov_b32 {sU}, {L_W2}
"""
    waitA = "" if nocomp else f"; the stage-A block, x and gate_w have been read: their LDS may be overwritten\nL_waitA:\nds_read_b32 v2, v1 offset:{F_A}\ns_waitcnt lgkmcnt(0)\nv_readfirstlane_b32 {sT0}, v2\ns_cmp_ge_u32 {sT0}, 4\ns_cbranch_scc0 L_waitA"
    xgroup = f"buffer_load_dwordx4 v4, {R(RB)}, {sT1} offen lds\ns_add_u32 m0, m0, 1040\ns_add_u32 {sT1}, {sT1}, 2048\n" * 4
    def blkgroup(v, rs):
        return f"buffer_load_dwordx4 {v}, {R(rs)}, {sOff} offen nt lds\ns_add_u32 m0, m0, 1024\ns_add_u32 {sOff}, {sOff}, {s8R}\n" * 4
    def kvgroup(v0, msk):
        t = f"s_and_b32 {sRot}, {sRot}, 0xffff\ns_add_u32 {sOff}, {sKV}, {sRot}\n"
        for j in range(4):
            t += f"buffer_load_dwordx4 v{v0 + (j & msk)}, {R(RB)}, {sOff} offen offset:{j*1024} nt lds\n"
        return t + f"s_add_u32 m0, m0, 4096\ns_add_u32 {sRot}, {sRot}, 4096\n"
    w2load = f"s_mov_b32 m0, {sU}\ns_add_u32 {sU}, {sU}, 1024\nbuffer_load_dwordx4 v9, {R(RA)}, {sW2} offen nt lds\ns_add_u32 {sW2}, {sW2}, 8192\n"
    segs = [
        ("", blkgroup("v8", RA), 8, "A"),
        (setup_x, xgroup, 1, "x0"),
        (f"s_xor_b32 {sT1}, {sKH}, 1\ns_lshl_b32 {sT1}, {sT1}, 9", xgroup + srd(RB, PG, 1024) + f"buffer_load_dwordx4 v16, {R(RB)}, 0 offen lds\n", 1, "x1"),
        (setup_k, kvgroup(10, 3), 16, "K"),
        (setup_v, kvgroup(14, 1) + "s_mov_b32 s69, m0\n" + w2load * 2 + "s_mov_b32 m0, s69\n", 4, "VW"),
        ("", kvgroup(14, 1), 4, "V"),
    ]
    setup_wo = srd(RA, PWO, 4 << 20) + f"s_mov_b32 {s8R}, 8192\ns_mov_b32 {sU}, {L_WO}\n"
    wo_in, wo_out = f"s_mov_b32 s69, m0\ns_mov_b32 m0, {sU}\ns_mov_b32 {sOff}, {sWo}", f"s_mov_b32 {sU}, m0\ns_mov_b32 {sWo}, {sOff}\ns_mov_b32 m0, s69"
    if wo_tail == 4:
        segs += [(waitA, kvgroup(14, 1), 8, "V"), (setup_wo + wo_in, blkgroup("v9", RA), 4, "wo")]
    else:
        segs += [(waitA, kvgroup(14, 1), 4, "V"), (setup_wo + wo_in, blkgroup("v9", RA), 4 - wo_tail, "wo"),
                 (wo_out, kvgroup(14, 1), 4, "V"), (wo_in, blkgroup("v9", RA), wo_tail, "wo")]
    nops = lambda t: len(re.findall(r"buffer_(?:load|store)", t))
    gi, ops, pend = 0, 0, 0
    P, kdone, vdone = {}, [], []
    sched = dict(sched or {})
    Wc = W
    cuts = sorted(set([k, k + 1, chk_g + 1, cw_g + 1] + list(sched) + ([xb[0]] if xb else []) + [x + 1 for x in gst]))
    def extra(t):
        nonlocal ops, pend
        e(t); ops += nops(t); pend += nops(t)
    extra(clears)
    for pre, body, n, name in segs:
        e(pre)
        nb = nops(body)
        while n > 0:
            m = min([n] + [c - gi for c in cuts if c > gi])
            t = body
            if gi >= k:
                if gi in sched:
                    pend += Wc - 4 * sched[gi]; Wc = 4 * sched[gi]
                if xb and gi == xb[0]:
                    e(f"s_mov_b32 s72, {xb[3]}\ns_bitcmp1_b32 s72, {sR}\ns_cselect_b64 vcc, 1, 0\ns_cselect_b32 s72, {4*(xb[1] - xb[2])}, 0\nv_add_u32 v3, s72, v3")
                    pend += Wc - 4 * xb[1]; Wc = 4 * xb[1]
                if pend: e(f"v_add_u32 v3, {pend}, v3"); pend = 0
                if xb and gi >= xb[0]:
                    lw = e.lab("LW")
                    t += f"s_waitcnt vmcnt({4*xb[2]})\ns_cbranch_vccnz {lw}\ns_waitcnt vmcnt({Wc})\n{lw}:\nv_add_u32 v3, {nb}, v3\nds_write_b32 v1, v3 offset:{F_PROG}\n"
                else: t += f"s_waitcnt vmcnt({Wc})\nv_add_u32 v3, {nb}, v3\nds_write_b32 v1, v3 offset:{F_PROG}\n"
            else:
                pend += m * nb
            if m == 1:
                e(t)
            else:
                l = e.lab("LD")
                e(f"s_mov_b32 {sCnt}, {m}\n{l}:\n{t}s_sub_u32 {sCnt}, {sCnt}, 1\ns_cmp_lg_u32 {sCnt}, 0\ns_cbranch_scc1 {l}")
            for j in range(m):
                if name == "K": kdone.append(ops + 4)
                if name.startswith("V"): vdone.append(ops + 4)
                ops += nb
            gi += m; n -= m
            if gi - 1 in gst: stamp()
            if gi == k + 1:
                extra(arrive)
                if lst: stamp()
            if gi == chk_g + 1:
                extra(check); P["chk"] = ops
            if gi == cw_g + 1: extra(cwarm)
        P[name] = ops
        if lst: stamp()
    assert pend == 0 and 5 <= k <= 8 and chk_g > k and ops - vdone[-1] == 4*wo_tail and wo_tail >= 2
    P_V = lambda ksteps: vdone[2*ksteps - 1]
    if xb:
        assert xb[2] > xb[1] >= 5 and xb[0] > k + 1
        e("s_cbranch_vccz L_drain")
        for left in range(4*xb[2] - 4, Wc - 4, -4):
            e(f"s_waitcnt vmcnt({left})\nv_add_u32 v3, 4, v3\nds_write_b32 v1, v3 offset:{F_PROG}")
        e("L_drain:")
    for left in range(Wc - 4, 0, -4):
        if bar and left <= 4*wo_tail:
            if left in (4*wo_tail, 4): e(f"s_waitcnt vmcnt({left})\ns_barrier")
        else:
            e(f"s_waitcnt vmcnt({left})\nv_add_u32 v3, 4, v3\nds_write_b32 v1, v3 offset:{F_PROG}")
    e("s_waitcnt vmcnt(0)")
    stamp()
    e("s_barrier")
    e("s_branch L_stampout" if stamps and echo is None else "s_endpgm")

    nst[0] = 1
    e("L_compute:")
    if stamps: e("v_mov_b32 v255, 0\ns_mov_b32 s95, s3")
    if nocomp:
        e("s_waitcnt lgkmcnt(0)")
        if stamps: e("v_writelane_b32 v255, s98, 0")
        e("s_branch " + ("L_stampout" if stamps else "L_end"))
    vN, vG4 = "v3", "v4"
    vAo, vBo, vSo, vCo = "v5", "v6", "v7", "v8"
    sSlot, sMT, sNH, sH = "s53", "s54", "s55", "s56"
    sAo, sBo, sSo, sCo = "s57", "s58", "s59", "s60"
    sSig, sSpin, sEg, sQo, sFo, sFo2, sCS = "s61", "s62", "s63", "s64", "s65", "s66", "s67"
    sBi, sSi, sBi2, sPure, sCi, sOo, mOdd, sY, sTag, sTM = "s68", "s69", "s70", "s71", "s72", "s73", "s[74:75]", "s76", "s77", "s78"
    WS, ROUT = R(RWS), RB
    MA, MB, MC = 0x00ff00ff00ff00ff, 0x000f000f000f000f, 0x3333333333333333
    def setexec(m):
        e(f"s_mov_b32 exec_lo, {hex(m & 0xffffffff)}\ns_mov_b32 exec_hi, {hex(m >> 32)}")
    vXa, vWa, vAa, vKa, vVa, vQa, vPa, vHa, vGa = 16, 17, 19, 20, 24, 26, 27, 28, 31
    vYo, vGx, vGw, vQo, vFo = "v101", "v102", 103, "v105", "v106"
    vBi, vSi, vTag, vCi, vOo = "v197", "v198", "v199", "v13", "v14"
    assert WS_A == 0
    e(f"""s_lshr_b32 {sHH}, {sR}, 3
s_and_b32 {sC}, {sR}, 7
s_lshr_b32 {sB}, {sR}, 2
s_lshl_b32 {sSlot}, {sG}, 5
s_add_u32 {sSlot}, {sSlot}, {sR}
s_and_b32 {sMT}, {sW}, 1
s_lshr_b32 {sNH}, {sW}, 1
s_lshl2_add_u32 {sH}, {sG}, {sHH}
v_mov_b32 v12, 1
v_and_b32 {vN}, 15, v0
v_lshrrev_b32 {vG4}, 4, v0
v_lshlrev_b32 v9, 4, {vG4}
s_lshl_b32 {sAo}, {sSlot}, 5
s_add_u32 {sAo}, {sAo}, {sW}
s_lshl_b32 {sAo}, {sAo}, 6
v_lshl_add_u32 {vAo}, {vN}, 8, v9
v_and_b32 v11, 1, {vN}
v_bfe_u32 v10, {vN}, 1, 2
v_mul_u32_u24 v{vXa}, 1040, v10
v_lshl_add_u32 v{vXa}, v11, 9, v{vXa}
v_lshl_add_u32 v{vXa}, {vG4}, 3, v{vXa}
v_add_u32 v{vXa}, {L_X0}, v{vXa}
s_lshl_b32 {sCo}, {sMT}, 5
s_add_u32 {sCo}, {sCo}, {sC}
s_lshl1_add_u32 {sCo}, {sCo}, {sNH}
s_lshl_b32 {sCo}, {sCo}, {6 + cj}
s_add_u32 {sCo}, {sCo}, {sH}
s_lshl_b32 {sCo}, {sCo}, 6
s_add_u32 {sCo}, {sCo}, {WS_C}
v_lshrrev_b32 v10, 2, {vN}
v_lshl_add_u32 {vCo}, v10, {16 + cj}, v9
v_lshl_add_u32 {vCo}, v11, {11 + cj}, {vCo}
v_cmp_eq_u32 {mOdd}, 1, v11
v_lshl_add_u32 v10, {vG4}, 2, v10
v_bfe_u32 v29, {vN}, 1, 1
v_lshlrev_b32 v11, 3, v11
v_and_b32 v30, 6, v10
v_xor_b32 v30, v30, v29
v_lshl_add_u32 v30, v30, 4, v11
v_lshl_add_u32 v30, v10, 7, v30
s_lshl_b32 {sT0}, {sW}, 5
v_xor_b32 v{vAa}, {sT0}, v30
v_add_u32 v{vAa}, {L_A}, v{vAa}
s_lshl_b32 {sT0}, {sNH}, 6
v_xor_b32 v{vWa}, {sT0}, v30
v_add_u32 v{vWa}, {L_WO}, v{vWa}
v_xor_b32 v{vWa+1}, 32, v{vWa}
v_and_b32 v30, 7, v10
v_lshlrev_b32 v30, 1, v30
v_xor_b32 v30, v30, v29
v_lshl_add_u32 v30, v30, 4, v11
v_lshl_add_u32 v30, v10, 8, v30
s_lshl_b32 {sT0}, {sW}, 6
v_xor_b32 v{vVa}, {sT0}, v30
v_add_u32 v{vVa}, {L_V}, v{vVa}
v_xor_b32 v{vVa+1}, 32, v{vVa}
v_xor_b32 v30, {vG4}, {vN}
v_lshlrev_b32 v30, 4, v30
v_lshl_add_u32 v30, {vN}, 8, v30
s_lshl_b32 {sT0}, {sW}, 12
v_add_u32 v{vKa}, {sT0}, v30
v_xor_b32 v{vKa+1}, 64, v{vKa}
v_xor_b32 v{vKa+2}, 0x80, v{vKa}
v_xor_b32 v{vKa+3}, 0xc0, v{vKa}
v_and_b32 v30, 3, {vN}
v_mul_u32_u24 v{vQa}, 272, v30
v_add3_u32 v{vQa}, v{vQa}, v9, v1
v_lshl_add_u32 v{vPa}, v30, 6, v9
v_add_u32 v{vPa}, v{vPa}, v1
v_lshlrev_b32 {vOo}, 3, v30
v_lshl_add_u32 {vOo}, {vG4}, 1, {vOo}
v_lshrrev_b32 v30, 2, {vN}
s_lshl_b32 {sT0}, {sMT}, 2
v_add_u32 v{vGa}, {sT0}, v30
v_mul_u32_u24 v{vHa}, 144, v{vGa}
v_lshl_add_u32 v{vHa}, {vG4}, 3, v{vHa}
v_add_u32 v{vHa}, v{vHa}, v1
v_lshl_add_u32 v{vGa}, v{vGa}, 2, v1
s_mul_i32 {sT0}, {sW}, 1040
s_add_u32 {sT0}, {sT0}, {L_X0}
v_lshlrev_b32 {vCi}, 4, v0
v_add_u32 {vGx}, {sT0}, {vCi}
v_and_b32 v{vGw}, 0x1ff, {vCi}
s_and_b32 {sT0}, {sR}, 1
s_lshl_b32 {sT0}, {sT0}, 9
v_add_u32 v{vGw}, {sT0}, v{vGw}
v_xor_b32 v{vGw+1}, 0x200, v{vGw}
v_add_u32 v{vGw}, {L_GW}, v{vGw}
v_add_u32 v{vGw+1}, {L_GW}, v{vGw+1}
v_and_b32 {vQo}, 31, v0
v_lshlrev_b32 {vYo}, 7, {vQo}
v_lshlrev_b32 {vQo}, 3, {vQo}
v_lshrrev_b32 {vFo}, 5, v0
v_lshl_add_u32 {vQo}, {vFo}, 12, {vQo}
v_lshlrev_b32 {vFo}, 3, v0
s_lshl4_add_u32 {sBo}, {sG}, {sW}
s_lshl_b32 {sBo}, {sBo}, 5
s_add_u32 {sBo}, {sBo}, {sR}
s_lshl_b32 {sBo}, {sBo}, 6
s_add_u32 {sBo}, {sBo}, {WS_B}
v_lshl_add_u32 {vBo}, {vN}, 13, v9
s_lshl_b32 {sSo}, {sG}, 7
s_add_u32 {sSo}, {sSo}, {sR}
s_lshl3_add_u32 {sSo}, {sSo}, {WS_S}
v_lshlrev_b32 {vSo}, 8, {vN}
s_lshl3_add_u32 {sBi}, {sH}, {sMT}
s_lshl_b32 {sBi}, {sBi}, 10
s_add_u32 {sBi}, {sBi}, {WS_B}
s_add_u32 {sBi2}, {sBi}, 4096
s_lshl1_add_u32 {sSi}, {sH}, {sMT}
s_lshl_b32 {sSi}, {sSi}, 7
s_add_u32 {sSi}, {sSi}, {WS_S}
v_lshl_add_u32 {vBi}, {vN}, 6, v9
v_lshlrev_b32 {vSi}, 3, {vN}
s_lshl3_add_u32 {sOo}, {sG}, {sC}
s_lshl2_add_u32 {sOo}, {sOo}, {sHH}
s_lshl_b32 {sCi}, {sOo}, {11 + cj}
s_add_u32 {sCi}, {sCi}, {WS_C}
s_lshl_b32 {sOo}, {sOo}, 5
s_getreg_b32 {sSig}, hwreg(HW_REG_XCC_ID, 0, 3)
s_add_u32 {sSig}, {sSig}, 1
s_lshl_b32 {sEg}, {sG}, 12
s_add_u32 {sEg}, {sEg}, {WS_E}
s_mov_b32 {sSpin}, {spin}
s_mov_b32 {sCS}, {fbits(LOG2E * 128 ** -0.5)}
s_movk_i32 {sTM}, 0x3ff
s_waitcnt lgkmcnt(0)
s_lshl3_add_u32 {sQo}, {sG}, {sW}
s_lshl_b32 {sQo}, {sQo}, 5
s_add_u32 {sQo}, {sQo}, {sB}
s_lshl_b32 {sQo}, {sQo}, 8
s_lshl3_add_u32 {sFo}, {sG}, {sHH}
s_lshl4_add_u32 {sFo}, {sFo}, {sW}
s_lshl_b32 {sFo}, {sFo}, 9
s_add_u32 {sFo}, {sFo}, {WS_A + 32768}
s_add_u32 {sFo2}, {sFo}, 4096""")
    e(srd(RWS, PWS, WS_END) + srd(ROUT, POUT, 8192))
    if stamps: e("v_writelane_b32 v255, s98, 0")
    stamp()
    e("; ---- stage A")
    lds_wait(F_PROG, P["x0"])
    stamp()
    WF, XF, D = 32, 64, 96
    for t in range(8):
        trfrag(WF + 4*t, vAa, t*4096, 2048)
        e(f"ds_read2_b64 v[{XF+4*t}:{XF+4*t+3}], v{vXa} offset0:{t*8} offset1:{t*8+4}")
        if t >= 3:
            e("s_waitcnt lgkmcnt(9)"); mfma(D, WF + 4*(t-3), XF + 4*(t-3), t == 3)
    for t in range(5, 8):
        e(f"s_waitcnt lgkmcnt({3*(7-t)})"); mfma(D, WF + 4*t, XF + 4*t, False)
    setexec(MA); e(f"s_nop 5\nbuffer_store_dwordx4 v[{D}:{D+3}], {vAo}, {WS}, {sAo} offen {'' if fast else 'sc1'}\ns_mov_b64 exec, -1")
    stamp()
    lds_wait(F_PROG, P["x1"])
    e(f"""ds_read_b128 v[32:35], {vGx}
ds_read_b128 v[36:39], {vGx} offset:{L_X1 - L_X0}
ds_read_b128 v[40:43], v{vGw}
ds_read_b128 v[44:47], v{vGw+1}""")
    signal(F_A)
    e("s_waitcnt lgkmcnt(0)")
    for j in range(8):
        e(f"""v_lshlrev_b32 v54, 16, v{32+j}
v_and_b32 v55, 0xffff0000, v{32+j}
v_lshlrev_b32 v56, 16, v{40+j}
v_and_b32 v57, 0xffff0000, v{40+j}
v_mul_f32 v54, v54, v56
v_mul_f32 v55, v55, v57
v_cvt_pk_bf16_f32 v54, v54, v55
v_and_b32 v55, 0xffff0000, v54
v_lshlrev_b32 v54, 16, v54""")
        e("v_add_f32 v52, v54, v55" if j == 0 else "v_add_f32 v52, v52, v54\nv_add_f32 v52, v52, v55")
    for ctl in ("row_shr:1 bound_ctrl:0", "row_shr:2 bound_ctrl:0", "row_shr:4 bound_ctrl:0", "row_shr:8 bound_ctrl:0", "row_bcast:15 row_mask:0xa"):
        e(f"s_nop 1\nv_add_f32_dpp v52, v52, v52 {ctl}")
    e(f"""v_cvt_pk_bf16_f32 v52, v52, v52
v_lshlrev_b32 v52, 16, v52
v_mul_f32 v52, {fbits(-LOG2E)}, v52
v_exp_f32 v52, v52
s_lshl_b32 {sT0}, {sW}, 3
v_add_f32 v52, 1.0, v52
v_rcp_f32 v52, v52
v_lshrrev_b32 v30, 5, v0
v_cvt_pk_bf16_f32 v52, v52, v52
v_lshlrev_b32 v52, 16, v52
v_lshl_add_u32 v30, v30, 2, v1
v_add_u32 v30, {sT0}, v30
s_mov_b32 exec_lo, 0x80000000
s_mov_b32 exec_hi, 0x80000000
ds_write_b32 v30, v52 offset:{O_G}
s_mov_b64 exec, -1""")
    evalw = f"""v_sub_u32 v34, v33, v32
v_cmp_eq_u32 vcc, {sSig}, v34
v_add_u32 v34, -1, v34
s_cmp_eq_u32 vcc_lo, -1
s_cselect_b32 {sPure}, {1 if fast else 0}, 0
v_cmp_gt_u32 vcc, 8, v34
s_cmp_eq_u32 vcc_lo, -1"""
    e(f"""; ---- arrival of the group, from the loader's in-stream copy; stage-C words carry X + 1 of their consumer in the low ten mantissa bits
v_and_b32 v35, 31, v0
v_lshl_add_u32 v35, v35, 2, v1
s_lshl_b32 {sT0}, {sG}, 7
v_add_u32 v36, {sT0}, v35
s_lshl3_add_u32 {sT0}, {sMT}, {sNH}
s_lshl4_add_u32 {sT0}, {sT0}, {sC}
v_and_b32 v30, 1, v0
v_lshrrev_b32 v37, 2, {vN}
v_lshl_add_u32 v30, v37, 2, v30
v_lshl_add_u32 v30, v30, 3, {sT0}
v_lshl_add_u32 v30, v30, 2, v1""")
    lds_wait(F_PROG, P["chk"], f"ds_read_b32 v33, v35 offset:{O_Y}\nds_read_b32 v32, v36 offset:{O_X}\nds_read_b32 {vTag}, v30 offset:{O_X}")
    e(f"""v_readlane_b32 {sTag}, v32, {sR}
v_add_u32 {vTag}, 1, {vTag}
{evalw}
s_cbranch_scc0 L_chkslow
L_chkback:
s_add_u32 {sY}, {sTag}, {sSig}
s_add_u32 {sTag}, {sTag}, 1
s_and_b32 {sTag}, {sTag}, {sTM}
s_cmp_eq_u32 {sPure}, 0
s_cbranch_scc1 L_impure
L_pure:""")
    late = [f"""; the group was not complete when the loader looked: look again a few times, then write the own Y through (other L2s cannot see it yet)
L_chkslow:
s_mov_b32 {sT1}, {soft}
L_chksoft:
buffer_load_dword v33, {vYo}, {WS}, {sEg} offen sc1
s_waitcnt vmcnt(0)
{evalw}
s_cbranch_scc1 L_chkback
s_sub_u32 {sT1}, {sT1}, 1
s_cbranch_scc0 L_chksoft
s_lshl_b32 {sT0}, {sSlot}, 7
s_add_u32 {sT0}, {sT0}, {WS_E}
s_add_u32 {sY}, {sTag}, {sSig}
v_mov_b32 v34, {sY}
v_mov_b32 v35, 0
s_mov_b64 exec, 1
buffer_store_dword v34, v35, {WS}, {sT0} offen sc1
s_mov_b64 exec, -1
L_chkhard:
buffer_load_dword v33, {vYo}, {WS}, {sEg} offen sc1
s_waitcnt vmcnt(0)
{evalw}
s_cbranch_scc1 L_chkback
s_sleep {backoff}
s_sub_u32 {sSpin}, {sSpin}, 1
s_cbranch_scc0 L_chkhard
s_mov_b32 {sSpin}, 0
s_branch L_chkback
L_impure:
v_mov_b32 v36, v33
s_mov_b32 exec_lo, {hex(MA & 0xffffffff)}
s_mov_b32 exec_hi, {hex(MA >> 32)}
buffer_store_dwordx4 v[{D}:{D+3}], {vAo}, {WS}, {sAo} offen sc1
s_mov_b64 exec, -1
s_cmp_eq_u32 {sW}, 0
s_cbranch_scc0 L_imp1
v_mov_b32 v32, -1
v_mov_b32 v33, -1
v_mov_b32 v34, -1
v_mov_b32 v35, -1
s_lshl_b32 {sT0}, {sSlot}, 10
s_add_u32 {sT0}, {sT0}, {WS_B}
buffer_store_dwordx4 v[32:35], {vCi}, {WS}, {sT0} offen sc1
s_lshl_b32 {sT0}, {sSlot}, 5
s_add_u32 {sT0}, {sT0}, {WS_S}
s_mov_b64 exec, 3
buffer_store_dwordx4 v[32:35], {vCi}, {WS}, {sT0} offen sc1
s_mov_b64 exec, -1
L_imp1:
s_waitcnt vmcnt(0)
s_mov_b64 exec, 1
ds_add_rtn_u32 v2, v1, v12 offset:{F_GO}
s_waitcnt lgkmcnt(0)
v_readfirstlane_b32 {sT0}, v2
s_cmp_eq_u32 {sT0}, 3
s_cbranch_scc0 L_imp2
s_lshl_b32 {sT0}, {sSlot}, 7
s_add_u32 {sT0}, {sT0}, {WS_E}
v_mov_b32 v32, {sY}
v_mov_b32 v33, {sY}
v_mov_b32 v34, 0
buffer_store_dwordx2 v[32:33], v34, {WS}, {sT0} offen sc1
L_imp2:
s_mov_b64 exec, -1
L_imp3:
buffer_load_dword v33, {vYo}, {WS}, {sEg} offen offset:4 sc1
s_waitcnt vmcnt(0)
v_cmp_eq_u32 vcc, v36, v33
s_cmp_eq_u32 vcc_lo, -1
s_cbranch_scc1 L_pure
s_sleep {backoff}
s_sub_u32 {sSpin}, {sSpin}, 1
s_cbranch_scc0 L_imp3
s_mov_b32 {sSpin}, 0
s_branch L_pure"""]
    stamp()
    def store2(ins):
        a, b = e.lab("S"), e.lab("S")
        e(f"s_cmp_eq_u32 {sPure}, 0\ns_cbranch_scc1 {a}\n{ins}\n{b}:")
        late.append(f"{a}:\n{ins} sc1\ns_branch {b}")
    def retry(loop, done):
        e(f"s_cbranch_vccz {done}\ns_mov_b64 exec, vcc\ns_sub_u32 {sSpin}, {sSpin}, 1\ns_cbranch_scc0 {loop}\ns_mov_b32 {sSpin}, 0\n{done}:\ns_mov_b64 exec, -1")
    e(f"""; ---- gather q and the FFN sums
L_gA:
buffer_load_dwordx2 v[32:33], {vQo}, {WS}, {sQo} offen sc1
buffer_load_dwordx2 v[34:35], {vQo}, {WS}, {sQo} offen offset:2048 sc1
buffer_load_dwordx2 v[36:37], {vFo}, {WS}, {sFo} offen sc1
buffer_load_dwordx2 v[38:39], {vFo}, {WS}, {sFo} offen offset:2048 sc1
buffer_load_dwordx2 v[40:41], {vFo}, {WS}, {sFo2} offen sc1
buffer_load_dwordx2 v[42:43], {vFo}, {WS}, {sFo2} offen offset:2048 sc1
s_waitcnt vmcnt(0)
v_max3_u32 v44, v32, v33, v34
v_max3_u32 v45, v35, v36, v37
v_max3_u32 v46, v38, v39, v40
v_max3_u32 v47, v41, v42, v43
v_max3_u32 v44, v44, v45, v46
v_max_u32 v44, v44, v47
v_cmp_eq_u32 vcc, -1, v44""")
    retry("L_gA", "L_gAdone")
    stamp()
    e(f"""v_add_f32 v32, v32, v34
v_add_f32 v33, v33, v35
v_cvt_pk_bf16_f32 v32, v32, v33
s_mul_i32 {sT0}, {sW}, 272
v_lshl_add_u32 v30, v0, 2, v1
v_add_u32 v30, {sT0}, v30
ds_write_b32 v30, v32 offset:{O_Q}""")
    signal(F_Q)
    e(f"""; h = silu(gate) * up
v_add_f32 v36, v36, v38
v_add_f32 v37, v37, v39
v_add_f32 v40, v40, v42
v_add_f32 v41, v41, v43
v_cvt_pk_bf16_f32 v36, v36, v37
v_cvt_pk_bf16_f32 v40, v40, v41
v_and_b32 v37, 0xffff0000, v36
v_lshlrev_b32 v36, 16, v36
v_and_b32 v41, 0xffff0000, v40
v_lshlrev_b32 v40, 16, v40
v_mul_f32 v38, {fbits(-LOG2E)}, v36
v_mul_f32 v39, {fbits(-LOG2E)}, v37
v_exp_f32 v38, v38
v_exp_f32 v39, v39
s_nop 0
v_add_f32 v38, 1.0, v38
v_add_f32 v39, 1.0, v39
v_rcp_f32 v38, v38
v_rcp_f32 v39, v39
s_nop 0
v_mul_f32 v36, v36, v38
v_mul_f32 v37, v37, v39
v_cvt_pk_bf16_f32 v36, v36, v37
v_and_b32 v37, 0xffff0000, v36
v_lshlrev_b32 v36, 16, v36
v_mul_f32 v36, v36, v40
v_mul_f32 v37, v37, v41
v_cvt_pk_bf16_f32 v36, v36, v37
v_lshrrev_b32 v29, 5, v0
s_lshl_b32 {sT0}, {sW}, 1
v_add_u32 v29, {sT0}, v29
v_mul_u32_u24 v29, 144, v29
v_and_b32 v30, 31, v0
v_lshl_add_u32 v29, v30, 2, v29
v_add_u32 v29, v29, v1
ds_write_b32 v29, v36 offset:{O_H}
v_and_b32 v30, 3, v0
v_lshl_add_u32 v30, v30, 2, v1
s_lshl_b32 {sT0}, {sNH}, 5
s_add_u32 {sT0}, {sT0}, {sMT}
s_lshl_b32 {sT0}, {sT0}, 3
v_add_u32 v29, {sT0}, v{vPa}""")
    KF, QF, S = 32, 96, 112
    def kreads(j):
        return "\n".join(f"ds_read_b128 v[{KF+16*j+4*t}:{KF+16*j+4*t+3}], v{vKa+t} offset:{j*16384}" for t in range(4))
    lds_wait(F_PROG, kdone[7])
    e(kreads(0) + "\n" + kreads(1))
    lds_wait(F_Q, 4)
    for t in range(4):
        e(f"ds_read_b128 v[{QF+4*t}:{QF+4*t+3}], v{vQa} offset:{O_Q + t*64}")
    for t in range(4):
        e(f"s_waitcnt lgkmcnt({3-t})")
        for j in range(2): mfma(S + 4*j, KF + 16*j + 4*t, QF + 4*t, t == 0)
    for j in (2, 3):
        lds_wait(F_PROG, kdone[4*j + 3], kreads(j))
        if j == 3: stamp()
        for t in range(4): mfma(S + 4*j, KF + 16*j + 4*t, QF + 4*t, t == 0)
    e(f"v_max3_f32 v32, v{S}, v{S+1}, v{S+2}\nv_max3_f32 v33, v{S+3}, v{S+4}, v{S+5}\nv_max3_f32 v32, v32, v{S+6}, v{S+7}")
    e(f"v_max3_f32 v33, v33, v{S+8}, v{S+9}\nv_max3_f32 v32, v32, v{S+10}, v{S+11}\nv_max_f32 v32, v32, v33")
    setexec(MB)
    e(f"v_max3_f32 v32, v32, v{S+12}, v{S+13}\nv_max3_f32 v32, v32, v{S+14}, v{S+15}")
    e(f"ds_max_f32 v30, v32 offset:{O_MAX}"); signal(F_MX)
    lds_wait(F_MX, 4, f"ds_read_b32 v32, v30 offset:{O_MAX}")
    vMC = 128
    e(f"v_mul_f32 v{vMC}, {sCS}, v32")
    for i in range(16): e(f"v_fma_f32 v{S+i}, v{S+i}, {sCS}, -v{vMC}")
    for i in range(16): e(f"v_exp_f32 v{S+i}, v{S+i}")
    setexec(MB)
    for i in range(8): e(f"v_cvt_pk_bf16_f32 v{32+i}, v{S+2*i}, v{S+2*i+1}")
    for j in range(4): e(f"ds_write_b64 v29, v[{32+2*j}:{33+2*j}] offset:{O_P + j*512}")
    signal(F_P)
    stamp()
    PF = 96
    e("; ---- P fragments, row sums (first wave), stats record\nv_mov_b32 v32, 0x3f803f80\nv_mov_b32 v33, 0x3f803f80\nv_mov_b32 v34, 0x3f803f80\nv_mov_b32 v35, 0x3f803f80")
    lds_wait(F_P, 4)
    for kk in range(8): e(f"ds_read_b128 v[{PF+4*kk}:{PF+4*kk+3}], v{vPa} offset:{O_P + kk*256}")
    e(f"s_cmp_eq_u32 {sW}, 0\ns_cbranch_scc0 L_nostat\ns_waitcnt lgkmcnt(0)")
    for kk in range(8): mfma(36, 32, PF + 4*kk, kk == 0)
    e(f"s_nop 7\nv_mov_b32 v{vMC+1}, v36\ns_mov_b64 exec, 0xf")
    store2(f"buffer_store_dwordx2 v[{vMC}:{vMC+1}], {vSo}, {WS}, {sSo} offen"); e("s_mov_b64 exec, -1\nL_nostat:")
    WOF, W2F, HF, D2, vGt = 132, 164, 180, 188, 196
    lds_wait(F_PROG, P["VW"])
    stamp()
    for j in range(2):
        for t in range(2): trfrag(W2F + 8*j + 4*t, vWa + j, L_W2 - L_WO + t*4096, 2048)
    for t in range(2):
        e(f"ds_read2_b64 v[{HF+4*t}:{HF+4*t+3}], v{vHa} offset0:{O_H//8 + t*8} offset1:{O_H//8 + t*8 + 4}")
    e(f"ds_read_b32 v{vGt}, v{vGa} offset:{O_G}\ns_waitcnt lgkmcnt(0)")
    for t in range(2):
        for j in range(2): mfma(D2 + 4*j, W2F + 8*j + 4*t, HF + 4*t, t == 0)
    e(f"""v_sub_f32 v32, 1.0, v{vGt}
v_cvt_pk_bf16_f32 v32, v32, v32
v_lshlrev_b32 v32, 16, v32
v_and_b32 v33, 2, v0
v_cmp_eq_u32 vcc, 0, v33
s_nop 2""")
    for i in range(4): e(f"v_cndmask_b32 v{D2+i}, v{D2+i}, v{D2+4+i}, {mOdd}")
    for i in range(4): e(f"v_mul_f32 v{D2+i}, v{D2+i}, v32")
    for i in range(4): e(f"v_cndmask_b32 v{D2+i}, 0, v{D2+i}, vcc")
    VF, O = 32, 200
    for k0, k1 in ((0, 3), (3, 5), (5, 7), (7, 8)):
        if k1 == 8 and bar: e("s_barrier")
        else: lds_wait(F_PROG, P_V(k1))
        if k1 == 8: stamp()
        for kq in range(k0, k1):
            for m in range(2): trfrag(VF + 8*(kq - k0) + 4*m, vVa + m, kq*8192, 4096)
        for kq in range(k0, k1):
            for m in range(2):
                e(f"s_waitcnt lgkmcnt({(k1 - 1 - kq)*4 + (2 if m == 0 else 0)})")
                mfma(O + 4*m, VF + 8*(kq - k0) + 4*m, PF + 4*kq, kq == 0)
    setexec(MB)
    e("s_nop 4")
    for i in range(4): e(f"v_cvt_pk_bf16_f32 v{32+i}, v{O+2*i}, v{O+2*i+1}")
    store2(f"buffer_store_dwordx4 v[32:35], {vBo}, {WS}, {sBo} offen"); e("s_mov_b64 exec, -1")
    stamp()
    BF, ST, DD = 40, 56, 64
    gB = f"""buffer_load_dwordx2 v[{ST}:{ST+1}], {vSi}, {WS}, {sSi} offen sc1
buffer_load_dwordx4 v[{BF}:{BF+3}], {vBi}, {WS}, {sBi} offen sc1
buffer_load_dwordx4 v[{BF+4}:{BF+7}], {vBi}, {WS}, {sBi} offen offset:2048 sc1
buffer_load_dwordx4 v[{BF+8}:{BF+11}], {vBi}, {WS}, {sBi2} offen sc1
buffer_load_dwordx4 v[{BF+12}:{BF+15}], {vBi}, {WS}, {sBi2} offen offset:2048 sc1"""
    e("; ---- stage B: the wo block is still in flight; the first gather round returns with it\n" + gB)
    if bar: e("s_barrier")
    else: lds_wait(F_PROG, ops - 4)
    for t in range(4):
        if t == 3: e("s_waitcnt lgkmcnt(8)\ns_barrier")
        for j in range(2): trfrag(WOF + 16*j + 4*t, vWa + j, t*4096, 2048)
    def btest(b, st):
        e(f"v_max3_u32 v58, v{b}, v{b+1}, v{b+2}\nv_max3_u32 v59, v{b+3}, v{b+4}, v{b+5}\nv_max3_u32 v60, v{b+6}, v{b+7}, v{b+8}")
        e(f"v_max3_u32 v58, v58, v{b+9}, v{b+10}\nv_max3_u32 v59, v59, v{b+11}, v{b+12}\nv_max3_u32 v60, v60, v{b+13}, v{b+14}")
        e(f"v_max3_u32 v58, v58, v{b+15}, v{st}\nv_max3_u32 v59, v59, v60, v{st+1}\nv_max_u32 v58, v58, v59\nv_cmp_eq_u32 vcc, -1, v58")
    e(f"s_branch L_gB1\nL_gB:\n{gB}\nL_gB1:\ns_waitcnt vmcnt(0)")
    btest(BF, ST)
    retry("L_gB", "L_gBdone")
    stamp()
    e("s_waitcnt lgkmcnt(0)")
    for t in range(4):
        for j in range(2): mfma(DD + 4*j, WOF + 16*j + 4*t, BF + 4*t, t == 0)
    X1, X2 = "quad_perm:[1,0,3,2] row_mask:0xf bank_mask:0xf", "quad_perm:[2,3,0,1] row_mask:0xf bank_mask:0xf"
    e(f"""; weight of split s: g * 2^(m_s - M) / sum_s 2^(m_s - M) l_s (v58), the neighbour's in v59
v_max_f32_dpp v58, v{ST}, v{ST} {X1}
s_nop 1
v_max_f32_dpp v58, v58, v58 {X2}
v_sub_f32 v58, v{ST}, v58
v_exp_f32 v58, v58
s_nop 0
v_mul_f32 v59, v58, v{ST+1}
v_mul_f32 v58, v58, v{vGt}
s_nop 0
v_add_f32_dpp v59, v59, v59 {X1}
s_nop 1
v_add_f32_dpp v59, v59, v59 {X2}
v_rcp_f32 v59, v59""")
    for i in range(4): e(f"v_cndmask_b32 v{72+i}, v{DD+4+i}, v{DD+i}, {mOdd}")
    e("v_mul_f32 v58, v58, v59")
    for i in range(4): e(f"v_cndmask_b32 v{DD+i}, v{DD+i}, v{DD+4+i}, {mOdd}")
    e(f"v_mov_b32_dpp v59, v58 {X1}")
    for i in range(4): e(f"v_fma_f32 v{DD+i}, v{DD+i}, v58, v{D2+i}")
    for i in range(4): e(f"v_fmac_f32_dpp v{DD+i}, v{72+i}, v59 {X1}")
    for i in range(4): e(f"v_add_f32_dpp v{DD+4+i}, v{DD+i}, v{DD+i} {X2}")
    setexec(MC)
    for i in range(4): e(f"v_bfi_b32 v{DD+4+i}, {sTM}, {vTag}, v{DD+4+i}")
    if noc: e("s_mov_b64 exec, -1\ns_branch L_stampout")
    e(f"buffer_store_dwordx4 v[{DD+4}:{DD+7}], {vCo}, {WS}, {sCo} offen sc1\ns_mov_b64 exec, -1")
    stamp()
    e(f"s_cmp_eq_u32 {sW}, 0")
    e("s_cbranch_scc0 " + ("L_stampout" if stamps and echo is None else "L_end"))
    e(f"""; ---- stage C (first compute wave); a round issued before the own store is through would come back too early
s_waitcnt vmcnt(0)
L_gC:
buffer_load_dwordx4 v[32:35], {vCi}, {WS}, {sCi} offen sc1
buffer_load_dwordx4 v[36:39], {vCi}, {WS}, {sCi} offen offset:1024 sc1
s_waitcnt vmcnt(0)
; a matching tag leaves zero bits behind""")
    for i in range(8): e(f"v_xor_b32 v{32+i}, {sTag}, v{32+i}")
    e(f"v_or3_b32 v40, v32, v33, v34\nv_or3_b32 v41, v35, v36, v37\nv_or3_b32 v40, v40, v38, v39\nv_bitop3_b32 v40, v40, v41, {sTM} bitop3:0xa8\nv_cmp_ne_u32 vcc, 0, v40")
    retry("L_gC", "L_gCdone")
    stamp()
    for i in range(4): e(f"v_add_f32 v{32+i}, v{32+i}, v{36+i}")
    e(f"""; rows 0..3 <- registers 0..3 (transposing reduction), then the four quads of each row
s_nop 0
v_permlane32_swap_b32 v32, v34
v_permlane32_swap_b32 v33, v35
s_nop 0
v_add_f32 v32, v32, v34
v_add_f32 v33, v33, v35
s_lshl2_add_u32 {sEg}, {sSlot}, {WS_X}
v_mov_b32 v41, {sY}
v_permlane16_swap_b32 v32, v33
v_mov_b32 v42, 0
v_add_f32 v32, v32, v33
s_nop 1
v_add_f32_dpp v32, v32, v32 row_ror:4 row_mask:0xf bank_mask:0xf
s_nop 1
v_add_f32_dpp v32, v32, v32 row_ror:8 row_mask:0xf bank_mask:0xf""")
    setexec(MB)
    e(f"""v_cvt_pk_bf16_f32 v32, v32, v32
buffer_store_short v32, {vOo}, {R(ROUT)}, {sOo} offen
s_mov_b64 exec, 1
buffer_store_dword v41, v42, {WS}, {sEg} offen""")
    if stamps:
        e("s_mov_b64 exec, -1\ns_waitcnt vmcnt(0)")
        stamp()
        if echo is not None:
            wg, i0, i1, mult = echo
            e(f"""s_cmp_eq_u32 s2, {wg}
s_cbranch_scc0 L_end
v_readlane_b32 s70, v255, {i0}
v_readlane_b32 s71, v255, {i1}
s_nop 3
s_sub_u32 s70, s71, s70
s_mul_i32 s70, s70, {mult}
L_echo:
s_memrealtime s[72:73]
s_waitcnt lgkmcnt(0)
s_sub_u32 s72, s72, s96
s_cmp_lt_u32 s72, s70
s_cbranch_scc1 L_echo""")
        else:
            e("L_stampout:")
            e(f"s_load_dwordx2 s[4:5], s[0:1], 96\ns_mov_b32 s6, {256<<20}\ns_mov_b32 s7, 0x20000\nv_lshlrev_b32 v2, 2, v0")
            e(f"s_mul_i32 s8, s2, 5\ns_add_u32 s8, s8, s95\ns_lshl_b32 s8, s8, 8\ns_add_u32 s8, s8, {STAMP_OFF}\ns_waitcnt lgkmcnt(0)")
            e(f"buffer_store_dword v255, v2, s[4:7], s8 offen")
    e("s_endpgm")
    for t in late: e(t)
    e("L_end:\ns_endpgm")
    nv = 256 if stamps else 208
    head = HEADER.strip("\n").split("\n") + [f"; @launch grid=(256,1,1) block=(320,1,1) lds={LDS_BYTES}",
            '.amdgcn_target "amdgcn-amd-amdhsa--gfx950"', ".text", f".globl {NAME}_kernel", ".p2align 8",
            f".type {NAME}_kernel,@function", f"{NAME}_kernel:"]
    foot = ['.section .rodata,"a"', ".p2align 6", f".amdhsa_kernel {NAME}_kernel",
            f"  .amdhsa_next_free_vgpr {nv}", "  .amdhsa_next_free_sgpr 102", f"  .amdhsa_accum_offset {nv}",
            "  .amdhsa_group_segment_fixed_size 0", "  .amdhsa_kernarg_size 104", "  .amdhsa_user_sgpr_count 2",
            "  .amdhsa_user_sgpr_kernarg_segment_ptr 1", "  .amdhsa_system_sgpr_workgroup_id_x 1",
            "  .amdhsa_float_denorm_mode_32 3", ".end_amdhsa_kernel"]
    return "\n".join(head + e.L + foot) + "\n"

if __name__ == "__main__":
    out = sys.argv[1] if len(sys.argv) > 1 else f"cdna_kernels/{NAME}.s"
    open(out, "w").write(gen())
```
